```python
import torch

def _softmax(x, axis=-1):
    return torch.softmax(x, dim=axis)
def _gelu(x):
    return torch.nn.functional.gelu(x, approximate="tanh")
def _silu(x):
    return torch.nn.functional.silu(x)
def _sigmoid(x):
    return torch.sigmoid(x)
def _layernorm(x, axis=-1, eps=1e-5):
    m = x.mean(dim=axis, keepdim=True)
    v = x.var(dim=axis, keepdim=True, unbiased=False)
    return (x - m) / torch.sqrt(v + eps)
def _scatter_add(tgt, idx, src, axis=0):
    return tgt.clone().index_add_(axis, idx, src)
def _segment_sum(src, seg, n):
    out = torch.zeros((n,) + src.shape[1:], dtype=src.dtype)
    return out.index_add_(0, seg, src)
def _pad(x, pw):
    flat = tuple(v for pair in reversed(pw) for v in pair)
    return torch.nn.functional.pad(x, flat)

kernel_name = 'gather_scatter__hybrid_graph_tf_nagphormer__graph'

def setup_inputs():

    _w = (lambda a: (lambda t: t.to(torch.bfloat16) if t.is_floating_point() else t)(torch.as_tensor(a)))
    N, deg, D = 10000, 32, 128
    E = N * deg
    src = (lambda lo, hi, *s: torch.randint(lo, hi, s))(0, N, E).to(torch.int64)
    dst = (lambda lo, hi, *s: torch.randint(lo, hi, s))(0, N, E).to(torch.int64)
    deg_cnt = torch.bincount(dst, minlength=N).to(float) + 1.0
    sc = 1.0 / D ** 0.5
    return {
        "x": _w((lambda *s: torch.randn(*s, dtype=torch.bfloat16) * 0.1)(N, D)),
        "src": _w(src),
        "dst": _w(dst),
        "deg_inv_sqrt": _w(1.0 / (lambda _x: torch.sqrt(torch.as_tensor(_x)))(deg_cnt)),
        "wq": _w((lambda *s: torch.randn(*s, dtype=torch.bfloat16) * 1.6)(D, D) * sc),
        "wk": _w((lambda *s: torch.randn(*s, dtype=torch.bfloat16) * 1.6)(D, D) * sc),
        "wv": _w((lambda *s: torch.randn(*s, dtype=torch.bfloat16) * 0.1)(D, D) * sc),
        "wo": _w((lambda *s: torch.randn(*s, dtype=torch.bfloat16) * 0.1)(D, D) * sc),
        "w_r": _w((lambda *s: torch.randn(*s, dtype=torch.bfloat16) * 0.1)(D)),
    }

def reference(x, src, dst, deg_inv_sqrt, wq, wk, wv, wo, w_r):
    N, D = x.shape[0], x.shape[1]
    K = 7
    h = x
    toks = [x]
    for _ in range(K):
        msg = h[src] * deg_inv_sqrt[src, None] * deg_inv_sqrt[dst, None]
        h = _segment_sum(msg, dst, N)
        toks.append(h)
    tok = torch.stack(toks, axis=1)
    t = _layernorm(tok, axis=-1)
    q   = torch.einsum('nkd,de->nke', t, wq)
    key = torch.einsum('nkd,de->nke', t, wk)
    v   = torch.einsum('nkd,de->nke', t, wv)
    scale = 1.0 / (D ** 0.5)
    attn = _softmax(torch.einsum('nkd,nld->nkl', q, key) * scale, axis=-1)
    o = torch.einsum('nkl,nld->nkd', attn, v)
    o = tok + torch.einsum('nkd,de->nke', o, wo)
    r = _layernorm(o, axis=-1)
    alpha = _softmax(torch.einsum('nkd,d->nk', r, w_r), axis=-1)
    return torch.einsum('nk,nkd->nd', alpha, o)
```

```python
class Asm:
    def __init__(self):
        self.L = []
        self.head = []
        self.kernels = []
        self.nlab = 0
    def __call__(self, s):
        for line in s.strip('\n').split('\n'):
            self.L.append('    ' + line.strip() if not line.strip().endswith(':') else line.strip())
    def launch(self, kernel, grid, block, lds):
        self.head.append(f'; @launch kernel={kernel} grid=({grid},1,1) block=({block},1,1) lds={lds}')
    def label(self, base='L'):
        self.nlab += 1
        return f'{base}_{self.nlab}'
    def begin(self, name):
        self.L.append(f'.globl {name}\n.p2align 8\n.type {name},@function\n{name}:')
    def end(self, name, vgpr, sgpr=102, accum=None):
        self.kernels.append((name, vgpr, sgpr, accum))
    def text(self, pre=''):
        o = [pre] if pre else []
        o += self.head
        o.append('.amdgcn_target "amdgcn-amd-amdhsa--gfx950"\n.text')
        import hazard
        fixed,added=hazard.fix(self.L)
        self.added=added
        o += fixed
        o.append('.section .rodata,"a"')
        for name, vgpr, sgpr, accum in self.kernels:
            acc = accum if accum is not None else min(256, (vgpr + 3) // 4 * 4)
            o.append(f'''.p2align 6
.amdhsa_kernel {name}
  .amdhsa_next_free_vgpr {vgpr}
  .amdhsa_next_free_sgpr {sgpr}
  .amdhsa_accum_offset {acc}
  .amdhsa_group_segment_fixed_size 0
  .amdhsa_kernarg_size 96
  .amdhsa_user_sgpr_count 2
  .amdhsa_user_sgpr_kernarg_segment_ptr 1
  .amdhsa_system_sgpr_workgroup_id_x 1
  .amdhsa_float_denorm_mode_32 3
.end_amdhsa_kernel''')
        return '\n'.join(o) + '\n'
```

```python
import re
TRANS=('v_exp_f32','v_log_f32','v_rcp_f32','v_rsq_f32','v_sqrt_f32','v_sin_f32','v_cos_f32','v_rcp_iflag_f32')
def regs(tok):
    tok=tok.strip()
    tok=re.sub(r'^-|^abs\(|\)$|^\||\|$','',tok)
    m=re.fullmatch(r'([vas])(\d+)',tok)
    if m: return [(m.group(1),int(m.group(2)))]
    m=re.fullmatch(r'([vas])\[(\d+):(\d+)\]',tok)
    if m: return [(m.group(1),i) for i in range(int(m.group(2)),int(m.group(3))+1)]
    if tok=='vcc': return [('s','vcc')]
    if tok=='m0': return [('s','m0')]
    if tok=='exec': return [('s','exec')]
    return []
def parse(line):
    s=line.split(';')[0].strip()
    if not s or s.endswith(':') or s.startswith('.'): return None
    parts=s.split(None,1); op=parts[0]; rest=parts[1] if len(parts)>1 else ''
    ops=[]; cur=''; dep=0
    for ch in rest:
        if ch=='[': dep+=1
        if ch==']': dep-=1
        if ch==',' and dep==0: ops.append(cur.strip()); cur=''
        else: cur+=ch
    if cur.strip(): ops.append(cur.strip())
    mods=''
    if ops:
        last=ops[-1].split(None,1); ops[-1]=last[0]; mods=last[1] if len(last)>1 else ''
    I=dict(op=op,ops=ops,mods=mods,w=[],r=[],kind='other',srcC=[],ab=[])
    R=[regs(o) for o in ops]
    base=re.sub(r'_(e32|e64|dpp|sdwa)$','',op)
    I['base']=base
    if op.startswith('v_mfma') or op.startswith('v_smfmac'):
        I['kind']='mfma'; I['w']=R[0]
        if op.startswith('v_smfmac'): I['srcC']=R[0]; I['ab']=R[1]+R[2]+R[3]
        else: I['srcC']=R[3]; I['ab']=R[1]+R[2]
        I['r']=I['srcC']+I['ab']
        I['passes']=8 if '32x32' in op else (2 if '4x4x4' in op else 4)
    elif op.startswith('v_'):
        I['kind']='valu'
        if base.startswith('v_cmp'):
            I['w']=R[0]; I['r']=sum(R[1:],[])
        elif base in ('v_readfirstlane_b32','v_readlane_b32'):
            I['w']=R[0]; I['r']=sum(R[1:],[])
        elif base.startswith('v_permlane'):
            I['w']=R[0]+R[1]; I['r']=R[0]+R[1]
        elif base in ('v_add_co_u32','v_sub_co_u32','v_addc_co_u32','v_subb_co_u32','v_mad_u64_u32'):
            I['w']=R[0]+R[1]; I['r']=sum(R[2:],[])
        else:
            I['w']=R[0]; I['r']=sum(R[1:],[])
            if base in ('v_fmac_f32','v_dot2c_f32_bf16','v_writelane_b32') or 'dpp' in op or 'row_' in mods or 'quad_perm' in mods: I['r']=I['r']+R[0]
        I['dpp']=('_dpp' in op) or ('quad_perm' in mods) or ('row_' in mods)
        I['trans']=base in TRANS
    elif op.startswith('ds_'):
        I['kind']='mem'
        if op.startswith('ds_read') or '_rtn' in op or 'permute' in op or 'swizzle' in op:
            I['w']=R[0]; I['r']=sum(R[1:],[])
        else: I['r']=sum(R,[])
    elif op.startswith('global_') or op.startswith('buffer_'):
        I['kind']='mem'; I['vmem']=True
        lds=('_lds_' in op) or re.search(r'\blds\b',mods+' '+rest)
        if lds: I['r']=sum(R,[])+[('s','m0')]; I['dma']=True
        elif 'load' in op: I['w']=R[0]; I['r']=sum(R[1:],[])+(R[0] if 'd16' in op else [])
        elif 'atomic' in op and 'sc0' in rest and op.startswith('global_'): I['w']=R[0]; I['r']=sum(R[1:],[])
        else:
            I['r']=sum(R,[])
            if re.search(r'store_dwordx[34]',op):
                I['wide']=R[1] if op.startswith('global_') else R[0]
    elif op.startswith('s_'):
        I['kind']='salu'
        if op.startswith(('s_cmp','s_cbranch','s_branch','s_waitcnt','s_nop','s_barrier','s_endpgm','s_sleep','s_setprio','s_bitcmp')): I['r']=sum(R,[])
        else:
            I['w']=R[0] if R else []; I['r']=sum(R[1:],[])
            if op.startswith('s_movrel'): I['r']=I['r']+[('s','m0')]
    return I
def need(P,C):
    n=0
    pw=set(P['w']); cr=set(C['r']); cw=set(C['w'])
    isv=lambda S:{x for x in S if x[0] in 'va'}
    iss=lambda S:{x for x in S if x[0]=='s'}
    if P['kind']=='valu':
        if C['kind']=='mfma' and isv(pw)&cr: n=max(n,2)
        if C['kind']=='valu':
            if isv(pw)&cr:
                if C.get('dpp') or C['base'].startswith('v_permlane'): n=max(n,2)
                if C['base'] in ('v_readfirstlane_b32','v_readlane_b32'): n=max(n,1)
                if P.get('trans') and not C.get('trans'): n=max(n,1)
                if 'sdwa' in P['op'] and 'dst_sel:DWORD' not in P['mods']: n=max(n,1)
                if 'op_sel' in P['mods']: n=max(n,1)
            if iss(pw)&cr:
                n=max(n,4 if C['base'] in ('v_readlane_b32','v_writelane_b32') else 2)
        if C.get('vmem') and iss(pw)&cr: n=max(n,5)
        if C['kind']=='salu' and iss(pw)&cr: n=max(n,1)
    if P['kind']=='mfma':
        ps=P['passes']; T={2:(4,5,5,1),4:(6,8,8,3),8:(10,12,12,7)}[ps]
        if C['kind']=='mfma':
            if pw&set(C['srcC']):
                exact=(P['w']==C['srcC'] and ps==C['passes'])
                n=max(n,(2 if ps==2 else 0) if exact else T[0])
            if pw&set(C['ab']): n=max(n,T[1])
            if (pw&cw) and not (pw&set(C['srcC'])): n=max(n,T[0])
        elif C['kind'] in ('valu','mem'):
            if pw&(cr|cw): n=max(n,T[2])
            if C['kind']=='valu' and set(P['srcC'])&cw: n=max(n,T[3])
    if P.get('wide') and set(P['wide'])&cw: n=max(n,2 if C['kind']=='valu' else 1)
    if P['kind']=='salu' and ('s','m0') in pw and (C.get('dma') or C['op'].startswith('s_movrel') or C['base']=='v_writelane_b32' or C['base']=='v_readlane_b32'): n=max(n,1)
    return n
def fix(lines):
    out=[]; hist=[]
    added=0
    for blk in lines:
        for line in blk.split('\n'):
            I=parse(line)
            if I is None: out.append(line); continue
            req=0
            for P,d in hist:
                req=max(req,need(P,I)-d)
            if req>0:
                added+=req
                r=req
                while r>0:
                    k=min(r,16); out.append(f'    s_nop {k-1}'); r-=k
                hist=[(P,d+req) for P,d in hist]
            out.append(line)
            st=(int(I['ops'][0],0)+1) if I['op']=='s_nop' else 1
            hist=[(P,d+st) for P,d in hist if d+st<20]
            hist.append((I,0))
    return out,added
```

```python
N=10000; NP=10240; E=320000
SLAB=0x280000
OFF_META=0
OFF_F1=0; OFF_PF=0x200; OFF_DF=0x600; OFF_F2=0x800+0x200; OFF_GEN=0x1400
OFF_W=0x10000
OFF_FS=0x20000
FSH=1024
OFF_IMG=0x120000
OFF_CELLS=0x260000
OFF_HS=0x4E0000
OFF_TOK=OFF_HS+1*SLAB
OFF_OVF1=OFF_TOK+8*SLAB
OFF_SPILL=OFF_OVF1+64*20480
OFF_DBG=0x3100000
HALF=40960
LCNT=39936
assert OFF_SPILL+160*16384<OFF_DBG
```

```python
import sys, re, math, struct
from asmlib import Asm
from layout import *
def f2u(x): return struct.unpack('<I',struct.pack('<f',x))[0]
LOG2E=1.4426950408889634
C0=24; LATE_LO=6144-5120; LATE_N=5120-LATE_LO; NU=12; QMAX=15; RMAX=5
Q0=C0//4; TRYMAX=0x400000
NAME='gather_scatter__hybrid_graph_tf_nagphormer__graph_kernel'
def vr(b,n=4): return f'v[{b}:{b+n-1}]'

class Remap:
    def __init__(self,a,voff,soff): self.a=a; self.voff=voff; self.soff=soff
    def label(self,b='L'): return self.a.label(b)
    def __call__(self,t):
        def sm(n): return n+self.soff if 8<=n<=39 else n
        t=re.sub(r'\bv\[(\d+):(\d+)\]',lambda m:f'v[{int(m[1])+self.voff}:{int(m[2])+self.voff}]',t)
        t=re.sub(r'\bv(\d+)\b',lambda m:f'v{int(m[1])+self.voff}',t)
        t=re.sub(r'\bs\[(\d+):(\d+)\]',lambda m:f's[{sm(int(m[1]))}:{sm(int(m[2]))}]',t)
        t=re.sub(r'\bs(\d+)\b',lambda m:f's{sm(int(m[1]))}',t)
        t=re.sub(r'\bS(\d+)\b',r's\1',t); t=re.sub(r'\bS\[(\d+):(\d+)\]',r's[\1:\2]',t); t=re.sub(r'\bV(\d+)\b',r'v\1',t)
        self.a(t)

vHsOff='v0'; vL16='v2'; vOne='v3'
ACC=4; AC=8; vIdx='v12'; DIS=(13,14); DIS2=(1,15)
RING=16; IDX=48; TS=4*QMAX; ZR=IDX+TS
sW='s6'; sP='s7'; sSlice='s8'; sNQ=9; sT0='s11'
sHop='s18'; sTry='s19'; sRec='s20'; sFast='s21'
sCur='s24'; sTgt='s25'; sPrev='s26'; sNext='s50'; sRedo='s51'; sNon='s53'; sGen='s98'
sSlow=32; sSpec=52; FLR=60; ZM=70
VT=48

class F:
    def __init__(self, stamps=0, look=3, forceslow=0, pr=(0,2,1,3), inject=0, order=(2,0,1,3,4), pos=0, R=16, bst=0, hq=2, xdelay=0, ps=4):
        self.a=Asm(); self.stamps=stamps; self.look=look; self.forceslow=forceslow; self.pr=pr
        self.inject=inject; self.order=order; self.pos=pos; self.R=R; self.cold=[]; self.bst=bst; self.nst=0
        self.name='k'; self.hq=hq; self.xdelay=xdelay; self.ps=ps
    def rt(self,i,va=IDX+110,vb=IDX+111):
        if self.stamps:
            self.a(f's_memrealtime s[100:101]\ns_mov_b64 s[96:97], exec\ns_mov_b64 exec, 1\nv_mov_b32 v{va}, s99\ns_waitcnt lgkmcnt(0)\nv_mov_b32 v{vb}, s100\nglobal_store_dword v{va}, v{vb}, s[4:5] offset:{4*i}\ns_mov_b64 exec, s[96:97]')
    def stamp(self, tb=1):
        if self.bst and tb==1:
            self.a(f's_memtime s[{76+2*self.nst}:{77+2*self.nst}]'); self.nst+=1
    def cond(self, cmp, fn):
        a=self.a; l=a.label('sk'); a(f'{cmp}\ns_cbranch_scc0 {l}'); fn(); a(f'{l}:')
    isXY=f's_cmp_lt_u32 {sW}, 8'
    def spin(self, load, test, sleep=0):
        a=self.a; lp=a.label('sp'); ok=a.label('so')
        en=a.label('se')
        if sleep: a(f's_branch {en}')
        a(f'{lp}:')
        if sleep: a(f's_sleep {sleep}\n{en}:')
        a(f'{load}\ns_add_u32 {sTry}, {sTry}, 1\ns_cmp_ge_u32 {sTry}, {TRYMAX}\ns_cbranch_scc1 {ok}\ns_waitcnt vmcnt(0)\n{test}\ns_cbranch_vccnz {lp}\n{ok}:\ns_waitcnt vmcnt(0)')
    def entry(self):
        a=self.a
        a(f'''s_cmp_ge_u32 s2, 256
s_cbranch_scc1 k_end
s_load_dwordx2 s[4:5], s[0:1], 88
s_load_dwordx4 s[40:43], s[0:1], 0
s_load_dwordx4 s[44:47], s[0:1], 16
v_mov_b32 v{VT}, v0
v_lshrrev_b32 v3, 6, v0
v_and_b32 v16, 63, v0
v_readfirstlane_b32 {sW}, v3
v_lshlrev_b32 {vL16}, 4, v16
s_lshr_b32 {sP}, s2, 5
s_and_b32 {sSlice}, s2, 7
s_lshl_b32 {sSlice}, {sSlice}, 2
s_bfe_u32 s3, s2, 0x20003
s_add_u32 {sSlice}, {sSlice}, s3
s_lshl_b32 {sT0}, {sW}, 3
s_add_u32 {sT0}, {sT0}, {sP}
s_lshl_b32 s27, {sT0}, 7
v_lshl_add_u32 v17, v16, 1, s27
v_add_u32 v18, {NU*1024}, v17
s_lshl_b32 s27, {sT0}, 14
s_lshl_b32 s30, {sSlice}, 3
s_add_u32 s27, s27, s30
v_lshl_add_u32 v19, v16, 8, s27
v_add_u32 v20, {NU*8*16384}, v19
s_mov_b32 {sTry}, 0''')
        if self.stamps: a(f's_lshl_b32 s99, s2, 4\ns_add_u32 s99, s99, {sW}\ns_lshl_b32 s99, s99, 8\ns_add_u32 s99, s99, {OFF_DBG}')
        r=Remap(a,VT,52)
        r(f'''s_lshl_b32 s3, s2, 7
v_lshrrev_b32 v48, 3, v0
v_lshlrev_b32 v48, 13, v48
v_and_b32 v49, 7, v0
v_lshl_add_u32 v48, v49, 4, v48
v_add_u32 v48, s3, v48
v_add_u32 v49, {96*8192}, v48
s_mov_b32 s14, {4*E}
s_mov_b32 s15, 0x20000
s_mov_b32 s18, {4*E}
s_mov_b32 s19, 0x20000
s_waitcnt lgkmcnt(0)
s_load_dword S98, s[4:5], {OFF_GEN}
s_mov_b32 s12, s42
s_mov_b32 s13, s43
s_mov_b32 s16, s44
s_mov_b32 s17, s45''')
        def pl():
            r('''buffer_load_dwordx4 v[16:19], v48, s[16:19], 0 offen
buffer_load_dwordx4 v[20:23], v49, s[16:19], 0 offen
buffer_load_dwordx4 v[8:11], v48, s[12:15], 0 offen
buffer_load_dwordx4 v[12:15], v49, s[12:15], 0 offen''')
        a(f'''s_mov_b32 s42, {256*N}
s_mov_b32 s43, 0x20000
s_mov_b32 s44, s46
s_mov_b32 s45, s47
s_mov_b32 s46, {2*N}
s_mov_b32 s47, 0x20000
s_cmp_lt_u32 s2, 64
s_cbranch_scc0 k_np''')
        pl()
    def xloads(self):
        self.a(f'''buffer_load_dwordx2 v[24:25], v19, s[40:43], 0 offen
buffer_load_dwordx2 v[26:27], v20, s[40:43], 0 offen
buffer_load_ushort v{DIS[0]}, v17, s[44:47], 0 offen
buffer_load_ushort v{DIS[1]}, v18, s[44:47], 0 offen''')
    def codepf(self):
        a=self.a
        def pf():
            a(f'''s_getpc_b64 s[16:17]
k_pc:
s_sub_u32 s27, s2, 64
s_lshr_b32 s27, s27, 3
s_lshl_b32 s27, s27, 1
s_add_u32 s27, s27, {sW}
s_sub_u32 s27, s27, 10
s_lshl_b32 s27, s27, 10
s_min_u32 s27, s27, k_end-k_pc-1024
s_add_u32 s16, s16, s27
s_addc_u32 s17, s17, 0
global_load_dwordx4 v[28:31], {vL16}, s[16:17]''')
        self.cond(f's_cmp_ge_u32 {sW}, 10', pf)
    def setup(self):
        R=self.R; r=40
        self.a(f'''s_mov_b32 s22, 0x55555555
s_mov_b32 s23, 0x55555555
s_lshl_b32 s27, {sT0}, 9
v_lshl_add_u32 {vHsOff}, v16, 3, s27
s_mul_i32 s27, {sSlice}, {NP*8}
s_add_u32 s12, s4, s27
s_addc_u32 s13, s5, 0
s_add_u32 s12, s12, {OFF_HS}
s_addc_u32 s13, s13, 0
s_add_u32 s14, s12, {OFF_TOK-OFF_HS}
s_addc_u32 s15, s13, 0
s_lshl_b32 s27, {sSlice}, 2
s_and_b32 s30, {sW}, 3
s_add_u32 s27, s27, s30
s_lshl_b32 s27, s27, 13
s_add_u32 s36, s4, s27
s_addc_u32 s37, s5, 0
s_add_u32 s36, s36, {OFF_FS}
s_addc_u32 s37, s37, 0
s_lshr_b32 s27, {sW}, 2
s_lshl_b32 s27, s27, 3
s_add_u32 s27, s27, {sP}
s_add_u32 s38, s36, s27
s_addc_u32 s39, s37, 0
s_mov_b32 s48, {hex(sum(1<<(4*i) for i in range(min(8,R))))}
s_mov_b32 s49, {hex(sum(1<<(4*i) for i in range(max(0,R-8))))}
s_mov_b32 s58, 0x01010101
s_mov_b32 s59, 0x01010101
v_bfe_u32 v{r}, v16, 4, 1
v_bfe_u32 v{r+1}, v16, 3, 1
v_bfe_u32 v{r+2}, v16, 2, 1
v_mov_b32 v{r+3}, 0x3f80
v_cmp_eq_u32 vcc, v{r}, v{r+1}
v_cndmask_b32 v{r+3}, 0, v{r+3}, vcc
v_cmp_eq_u32 vcc, 0, v{r+2}
v_cndmask_b32 v{AC}, 0, v{r+3}, vcc
v_cndmask_b32 v{AC+1}, 0, v{r+3}, vcc
v_cndmask_b32 v{AC+2}, v{r+3}, 0, vcc
v_cndmask_b32 v{AC+3}, v{r+3}, 0, vcc
v_and_b32 v{r}, 3, v16
v_add_u32 v{r+1}, 1, v{r}
v_and_b32 v{r+1}, 3, v{r+1}
v_lshl_or_b32 v{r}, v{r+1}, 2, v{r}
s_mov_b32 s27, 0x11111111
v_mul_lo_u32 {vIdx}, v{r}, s27
v_mov_b32 {vOne}, 1
s_mov_b32 {sHop}, 0
s_mov_b32 {sCur}, 0
s_mov_b32 {sRec}, 0''')
    def nonce(self):
        self.a(f'''s_waitcnt lgkmcnt(0)
s_mul_i32 {sNon}, {sGen}, 0x9E3779B1
s_lshr_b32 s27, {sNon}, 15
s_xor_b32 {sNon}, {sNon}, s27
s_mul_i32 {sNon}, {sNon}, 0x85EBCA6B
s_add_u32 {sNon}, {sNon}, 0x632BE5AB''')
    def a1(self):
        a=Remap(self.a,VT,52); CNT=49152
        a(f'''v_lshlrev_b32 v1, 4, v0
v_mov_b32 v4, -1
v_mov_b32 v5, -1
v_mov_b32 v6, -1
v_mov_b32 v7, -1
v_mov_b32 v3, 0
v_lshlrev_b32 v2, 2, v0
ds_write_b128 v1, v[4:7]
ds_write_b128 v1, v[4:7] offset:12288
ds_write_b128 v1, v[4:7] offset:24576
ds_write_b128 v1, v[4:7] offset:36864
ds_write_b32 v2, v3 offset:{CNT}
v_cmp_gt_u32 vcc, {4*E}, v49
v_mov_b32 v3, 1
s_mov_b64 s[22:23], vcc
s_movk_i32 s21, 5120
s_movk_i32 s20, 10240''')
        self.nonce()
        a('s_barrier')
        for h in range(2):
            a(f's_waitcnt vmcnt({3-h})')
            if h: a('s_mov_b64 exec, s[22:23]')
            for i in range(4):
                d=16+4*h+i
                a(f'v_lshrrev_b32 v{24+4*h+i}, 6, v{d}\nv_lshlrev_b32 v{32+4*h+i}, 2, v{24+4*h+i}\nds_add_rtn_u32 v{40+4*h+i}, v{32+4*h+i}, v3 offset:{CNT}')
        a('s_mov_b64 exec, -1\ns_waitcnt vmcnt(0)')
        self.rt(2)
        self.xloads()
        for i in range(8):
            s=8+i; d=16+i
            a(f'v_subrev_u32 v48, s21, v{s}\nv_add_u32 v{s}, s20, v{s}\nv_min_u32 v{s}, v{s}, v48\nv_lshl_or_b32 v{s}, v{d}, 16, v{s}')
        a('v_mov_b32 v49, 0\nv_mov_b32 v50, 0x80000')
        for h in range(2):
            a('s_waitcnt lgkmcnt(4)')
            if h: a('s_mov_b64 exec, s[22:23]')
            for i in range(4):
                n=4*h+i
                a(f'v_lshlrev_b32 v48, 8, v{24+n}\nv_lshl_add_u32 v48, v{40+n}, 2, v48\nv_cmp_gt_u32 vcc, 64, v{40+n}\nv_max_u32 v49, v49, v{40+n}\nv_cndmask_b32 v48, v50, v48, vcc\nds_write_b32 v48, v{8+n}')
        ov=a.label('ovf'); back=a.label('ovb')
        a(f's_mov_b64 exec, -1\nv_cmp_le_u32 vcc, 64, v49\ns_cbranch_vccnz {ov}\n{back}:')
        a(f'''v_lshrrev_b32 v2, 4, v0
v_lshlrev_b32 v2, 14, v2
v_and_b32 v3, 15, v0
v_lshl_add_u32 v2, v3, 4, v2
s_lshl_b32 s3, s2, 8
s_add_u32 s12, s4, {OFF_CELLS}
s_addc_u32 s13, s5, 0
s_mov_b32 s14, {157*16384}
v_mov_b32 v25, {CNT+1024}
s_waitcnt lgkmcnt(0)
s_barrier
ds_read_b128 v[8:11], v1
ds_read_b128 v[12:15], v1 offset:12288
ds_read_b128 v[16:19], v1 offset:24576
ds_read_b128 v[20:23], v1 offset:36864
ds_read_b32 v27, v25''')
        for r in range(4):
            a(f's_waitcnt lgkmcnt({4-r})\nbuffer_store_dwordx4 v[{8+4*r}:{11+4*r}], v2, s[12:15], s3 offen sc1')
            if r<3: a(f's_add_u32 s3, s3, {48*16384}')
        a(f'''s_lshl_b32 s3, s2, 3
s_add_u32 s3, s3, {OFF_F1}
v_mov_b32 v25, s3
v_mov_b32 v26, S53
s_waitcnt vmcnt(0) lgkmcnt(0)
s_barrier''')
        self.cond(f's_cmp_eq_u32 {sW}, 0', lambda: a('s_mov_b64 exec, 1\nglobal_store_dwordx2 v25, v[26:27], s[4:5] sc1\ns_mov_b64 exec, -1'))
        def ovf(_):
            a(f's_mul_i32 s3, s2, 20480\ns_add_u32 s3, s3, {OFF_OVF1}\nv_mov_b32 v51, {CNT+1024}')
            for n in range(8):
                l=a.label('ovs')
                a(f's_mov_b64 exec, {"-1" if n<4 else "s[22:23]"}\nv_cmp_le_u32 vcc, 64, v{40+n}\ns_and_b64 exec, exec, vcc\ns_cbranch_execz {l}')
                a(f'ds_add_rtn_u32 v48, v51, v3\ns_waitcnt lgkmcnt(0)\nv_lshl_add_u32 v48, v48, 2, s3\nglobal_store_dword v48, v{8+n}, s[4:5] sc1\n{l}:')
            a('s_mov_b64 exec, -1')
        self.cold.append((ov,back,ovf))
    def a2_init(self):
        a=Remap(self.a,VT,52)
        a(f'''v_lshlrev_b32 v4, 4, v0
v_cmp_gt_u32 vcc, 512, v0
v_cndmask_b32 v16, 0, -1, vcc
v_mov_b32 v17, v16
v_mov_b32 v18, v16
v_mov_b32 v19, v16
ds_write_b128 v4, v[16:19] offset:{HALF}''')
    def a2(self):
        a=Remap(self.a,VT,52); sT='s37'
        LL=HALF+8192; LC=HALF+8704; LD=HALF+9216; LP=HALF+9472; LIST=HALF+9728
        a(f'''s_sub_u32 {sT}, s2, 64
s_lshl_b32 s3, {sT}, 14
s_add_u32 s8, s4, s3
s_addc_u32 s9, s5, 0
s_add_u32 s8, s8, {OFF_CELLS}
s_addc_u32 s9, s9, 0
s_mov_b32 s3, 0xAAAB
v_mul_u32_u24 v1, s3, v0
v_lshrrev_b32 v1, 19, v1
v_mul_u32_u24 v2, 12, v1
v_sub_u32 v2, v0, v2
v_lshlrev_b32 v3, 8, v1
v_lshl_add_u32 v3, v2, 4, v3
v_mov_b32 v12, -1
v_mov_b32 v13, -1
v_mov_b32 v14, -1
v_mov_b32 v15, -1
s_lshr_b32 s3, {sT}, 3
s_cmp_lt_u32 s3, {NU}
s_cselect_b32 s12, {LATE_N}, 0
s_cselect_b32 s13, 0, 12
s_cselect_b32 s14, 48, 44
s_cselect_b32 s15, {C0}, 0
s_mov_b32 s16, 0
v_mov_b32 v5, 0x10001
v_mov_b32 v7, {LP}
v_lshrrev_b32 v6, 1, V2
v_cmp_gt_u32 s[10:11], 4, v2
s_waitcnt lgkmcnt(0)
s_barrier''')
        def poll1():
            self.spin(f'global_load_dwordx2 v[{VT+20}:{VT+21}], v{VT+6}, s[4:5] offset:{OFF_F1} sc1', f'v_cmp_ne_u32 vcc, {sNon}, v{VT+20}', self.ps)
            a('v_cmp_ne_u32 vcc, 0, v21\ns_cmp_lg_u64 vcc, 0\ns_cselect_b32 s38, 0x800000, 0\nv_mov_b32 v20, s38\ns_mov_b64 exec, 1\nds_write_b32 v7, v20 offset:4\ns_mov_b64 exec, -1\ns_waitcnt lgkmcnt(0)')
        self.cond(f's_cmp_eq_u32 {sW}, 0', poll1)
        a(f'''s_barrier
global_load_dwordx4 v[8:11], v3, s[8:9] sc1
s_mov_b64 exec, s[10:11]
global_load_dwordx4 v[12:15], v3, s[8:9] offset:192 sc1
s_mov_b64 exec, -1''')
        self.rt(2)
        a(f's_waitcnt vmcnt({2 if self.stamps else 1})')
        p1=a.label('p1'); p1e=a.label('p1e')
        a(f'{p1}:')
        for i in range(4):
            e=8+i; j=20+i; q=24+i; b=28+i
            a(f'''v_cmp_ne_u32 s[{28+2*i}:{29+2*i}], -1, v{e}
v_bfe_u32 v{j}, v{e}, 16, 6
v_sub_u32 v{q}, v{e}, v{j}
v_and_b32 v{q}, 31, v{q}
v_and_b32 v36, 0xffff, v{e}
v_subrev_u32 v36, {LATE_LO}, v36
v_cmp_gt_u32 vcc, s12, v36
v_bfe_u32 v37, v{e}, 5, 1
v_mul_u32_u24 v37, s13, v37
v_mov_b32 v38, s15
v_cndmask_b32 v37, v37, v38, vcc
v_cndmask_b32 v38, 1, v5, vcc
v_lshlrev_b32 v{b}, v{q}, 1
v_cmp_lt_u32 vcc, v{q}, v37
v_add_u32 v36, 32, v{q}
v_cndmask_b32 v{q}, v{q}, v36, vcc
v_lshlrev_b32 v36, 2, v{j}
v_cmp_gt_u32 vcc, s14, v{q}
v_lshrrev_b32 v37, 5, v{q}
v_lshl_add_u32 v37, v{j}, 1, v37
v_lshlrev_b32 v37, 2, v37
s_and_b64 s[{20+2*i}:{21+2*i}], s[{28+2*i}:{29+2*i}], vcc
s_mov_b64 exec, s[{28+2*i}:{29+2*i}]
ds_add_u32 v36, v38 offset:{LD}
s_mov_b64 exec, s[{20+2*i}:{21+2*i}]
ds_or_rtn_b32 v{32+i}, v37, v{b} offset:{LL}
s_mov_b64 exec, -1''')
        a('s_mov_b32 s17, 0')
        for i in range(4):
            e=8+i; j=20+i; q=24+i; b=28+i
            a(f'''v_and_b32 v36, 32, v{j}
v_and_or_b32 v36, v{e}, 31, v36
v_lshrrev_b32 v37, 5, v{q}
v_lshl_add_u32 v36, v36, 1, v37
v_lshlrev_b32 v36, 2, v36
v_lshrrev_b32 v37, 3, v{q}
v_lshlrev_b32 v37, 10, v37
v_and_b32 v38, 7, v{q}
v_lshl_add_u32 v37, v38, 1, v37
v_lshl_add_u32 v37, v{j}, 4, v37
s_waitcnt lgkmcnt(6)
v_and_b32 v38, v{32+i}, v{b}
v_cmp_eq_u32 vcc, 0, v38
s_and_b64 s[{20+2*i}:{21+2*i}], s[{20+2*i}:{21+2*i}], vcc
s_andn2_b64 s[{28+2*i}:{29+2*i}], s[{28+2*i}:{29+2*i}], s[{20+2*i}:{21+2*i}]
s_mov_b64 exec, s[{20+2*i}:{21+2*i}]
ds_or_b32 v36, v{b} offset:{LC}
ds_write_b16 v37, v{e} offset:{HALF}
s_mov_b64 exec, -1
v_mbcnt_lo_u32_b32 v{32+i}, s{28+2*i}, 0
v_mbcnt_hi_u32_b32 v{32+i}, s{29+2*i}, v{32+i}
v_add_u32 v{32+i}, s17, v{32+i}
s_bcnt1_i32_b64 s18, s[{28+2*i}:{29+2*i}]
s_add_u32 s17, s17, s18''')
        a('''v_mov_b32 v36, s17
s_mov_b64 exec, 1
ds_add_rtn_u32 v37, v7, v36
s_mov_b64 exec, -1
s_waitcnt lgkmcnt(0)
v_readfirstlane_b32 s18, v37''')
        for i in range(4):
            a(f'v_add_lshl_u32 v36, v{32+i}, s18, 2\ns_mov_b64 exec, s[{28+2*i}:{29+2*i}]\nds_write_b32 v36, v{8+i} offset:{LIST}\ns_mov_b64 exec, -1')
        a(f'''s_cmp_eq_u32 s16, 1
s_cbranch_scc1 {p1e}
s_mov_b32 s16, 1
s_waitcnt vmcnt(0)
v_cmp_ne_u32 vcc, -1, v12
s_cbranch_vccz {p1e}
v_mov_b32 v8, v12
v_mov_b32 v9, v13
v_mov_b32 v10, v14
v_mov_b32 v11, v15
s_branch {p1}
{p1e}:
s_waitcnt lgkmcnt(0)
s_barrier''')
        self.rt(3)
        a(f'''v_and_b32 v1, 63, v0
v_lshlrev_b32 v2, 2, v1
ds_read_b32 v3, v2 offset:{LD}
ds_read_b32 v4, v7
v_lshlrev_b32 v6, 2, v0
ds_read_b32 v8, v6 offset:{LIST}
s_mov_b32 s3, 0x9E3779
v_mul_u32_u24 v40, s3, v0
s_mov_b32 s36, 0x41C64D
v_mov_b32 v41, 12345
s_waitcnt lgkmcnt(1)
v_readfirstlane_b32 s19, v4
v_lshrrev_b32 v4, 16, v3
v_and_b32 v3, 0xffff, v3
v_cmp_ne_u32 vcc, 0, v4
v_add_u32 v4, s15, v4
v_cndmask_b32 v4, 0, v4, vcc
v_max_u32 v3, v3, v4''')
        for sh in (8,4,2,1): a(f'v_max_u32_dpp v3, v3, v3 row_ror:{sh} row_mask:0xf bank_mask:0xf')
        a(f'''v_readlane_b32 s20, v3, 0
v_readlane_b32 s21, v3, 16
v_readlane_b32 s22, v3, 32
v_readlane_b32 s23, v3, 48
s_max_u32 s20, s20, s21
s_max_u32 s22, s22, s23
s_max_u32 s20, s20, s22
s_add_u32 s20, s20, 3
s_and_b32 s20, s20, 0xfffffffc
s_min_u32 s20, s20, {4*QMAX}
s_max_u32 s20, s20, 4
s_sub_u32 s20, 64, s20
s_lshr_b64 s[20:21], -1, s20
s_lshl_b32 s22, -1, s15
s_and_b32 s22, s22, s20
s_cmp_eq_u32 s15, 0
s_cselect_b32 s23, 85, 0
s_cselect_b32 s24, -1, {(1<<C0)-1}
v_mov_b32 v42, v0''')
        outer=a.label('out'); inner=a.label('inn'); fin=a.label('fin'); rare=a.label('rare'); rback=a.label('rbk'); nxt=a.label('nxt')
        a(f'''{outer}:
v_cmp_gt_u32 vcc, s19, v42
s_and_b64 exec, vcc, -1
s_cbranch_execz {fin}
s_waitcnt lgkmcnt(0)
v_bfe_u32 v14, v8, 16, 6
v_lshlrev_b32 v9, 3, v14
v_and_b32 v10, 32, v14
v_and_or_b32 v10, v8, 31, v10
v_lshlrev_b32 v10, 3, v10
ds_read_b64 v[16:17], v9 offset:{LL}
ds_read_b64 v[18:19], v10 offset:{LC}
v_lshlrev_b32 v14, 4, v14
v_and_b32 v11, 0xffff, v8
v_subrev_u32 v11, {LATE_LO}, v11
v_cmp_gt_u32 vcc, s12, v11
v_mov_b32 v11, s20
v_mov_b32 v12, s22
v_cndmask_b32 v11, v11, v12, vcc
v_mov_b32 v12, s23
v_mov_b32 v13, 0x80
v_cndmask_b32 v12, v12, v13, vcc
v_mov_b32 v13, s24
v_cndmask_b32 v13, v13, -1, vcc
s_mov_b32 s25, 0
s_waitcnt lgkmcnt(0)
{inner}:
v_mad_u32_u24 v40, v40, s36, v41
v_bitop3_b32 v20, v11, v16, v18 bitop3:0x10
v_bitop3_b32 v21, s21, v17, v19 bitop3:0x10
s_add_u32 s25, s25, 1
v_or_b32 v24, v20, v21
v_cmp_eq_u32 s[26:27], 0, v24
s_cmp_gt_u32 s25, {RMAX}
s_cselect_b64 s[26:27], exec, s[26:27]
s_cmp_lg_u64 s[26:27], 0
s_cbranch_scc1 {rare}
{rback}:
v_and_b32 v24, v20, v13
v_cmp_ne_u32 vcc, 0, v24
v_bfe_u32 v25, v40, 11, 8
v_cndmask_b32 v20, v20, v24, vcc
v_cmp_lt_u32 s[28:29], v25, v12
v_cmp_ne_u32 s[30:31], 0, v21
v_cmp_eq_u32 vcc, 0, v20
v_bfe_u32 v25, v40, 19, 5
s_and_b64 s[28:29], s[28:29], s[30:31]
s_or_b64 vcc, vcc, s[28:29]
v_cndmask_b32 v24, v20, v21, vcc
v_alignbit_b32 v24, v24, v24, v25
v_ffbl_b32 v24, v24
v_add_u32 v24, v24, v25
v_lshlrev_b32 v25, v24, 1
v_cndmask_b32 v22, v25, 0, vcc
v_cndmask_b32 v23, 0, v25, vcc
ds_or_rtn_b64 v[16:17], v9, v[22:23] offset:{LL}
ds_or_rtn_b64 v[18:19], v10, v[22:23] offset:{LC}
v_bfe_u32 v25, v24, 3, 2
v_and_b32 v24, 7, v24
v_lshl_add_u32 v24, v24, 1, v14
v_lshl_add_u32 v24, v25, 10, v24
v_add_u32 v25, 4096, v24
v_cndmask_b32 v24, v24, v25, vcc
s_mov_b64 s[34:35], exec
s_waitcnt lgkmcnt(1)
v_and_b32 v25, v16, v22
v_and_or_b32 v25, v17, v23, v25
v_cmp_eq_u32 s[28:29], 0, v25
s_waitcnt lgkmcnt(0)
v_and_b32 v25, v18, v22
v_and_or_b32 v25, v19, v23, v25
v_cmp_eq_u32 s[30:31], 0, v25
s_or_b64 s[32:33], s[30:31], s[26:27]
s_and_b64 s[32:33], s[32:33], s[28:29]
s_mov_b64 exec, s[32:33]
ds_write_b16 v24, v8 offset:{HALF}
s_andn2_b64 exec, s[28:29], s[32:33]
ds_xor_b64 v9, v[22:23] offset:{LL}
s_andn2_b64 exec, s[30:31], s[32:33]
ds_xor_b64 v10, v[22:23] offset:{LC}
s_andn2_b64 exec, s[34:35], s[32:33]
s_cbranch_execnz {inner}
{nxt}:
s_mov_b64 exec, -1
v_add_u32 v42, 768, v42
v_lshlrev_b32 v6, 2, v42
ds_read_b32 v8, v6 offset:{LIST}
s_branch {outer}''')
        noext=a.label('noext')
        a(f'''{rare}:
s_mov_b64 s[34:35], exec
s_mov_b64 exec, s[26:27]
v_bitop3_b32 v20, v11, v16, v16 bitop3:0x10
v_bitop3_b32 v21, s21, v17, v17 bitop3:0x10
v_or_b32 v24, v20, v21
v_cmp_eq_u32 vcc, 0, v24
s_and_b64 exec, exec, vcc
s_cbranch_execz {noext}
v_mov_b32 v24, {(1<<(4*QMAX-32))-1}
v_bitop3_b32 v20, -1, v16, s20 bitop3:0x10
v_bitop3_b32 v21, v24, v17, s21 bitop3:0x10
v_sub_u32 v24, 0, v20
v_and_b32 v20, v20, v24
v_sub_u32 v24, 0, v21
v_and_b32 v21, v21, v24
v_cmp_ne_u32 vcc, 0, v20
v_cndmask_b32 v21, v21, 0, vcc
v_or_b32 v24, v20, v21
v_cmp_eq_u32 vcc, 0, v24
s_and_b64 exec, exec, vcc
s_cbranch_execz {noext}
s_andn2_b64 s[34:35], s[34:35], exec
v_mov_b32 v24, 1
ds_add_rtn_u32 v24, v7, v24 offset:4
s_lshl_b32 s3, {sT}, 14
s_add_u32 s3, s3, {OFF_SPILL}
s_waitcnt lgkmcnt(0)
v_and_b32 v24, 0xffff, v24
v_lshl_add_u32 v24, v24, 2, s3
global_store_dword v24, v8, s[4:5] sc1
{noext}:
s_mov_b64 exec, s[34:35]
s_cbranch_execz {nxt}
s_branch {rback}''')
        a(f'''{fin}:
s_mov_b64 exec, -1
v_lshlrev_b32 v4, 4, v0
s_lshl_b32 s3, {sT}, 13
s_add_u32 s8, s4, s3
s_addc_u32 s9, s5, 0
s_add_u32 s8, s8, {OFF_IMG}
s_addc_u32 s9, s9, 0
v_lshlrev_b32 v2, 3, v1
s_waitcnt vmcnt(0) lgkmcnt(0)
s_barrier''')
        self.rt(4)
        a(f'''s_cmp_ge_u32 s6, 8
s_cbranch_scc1 k_join
ds_read_b128 v[8:11], v4 offset:{HALF}
ds_read_b64 v[16:17], v2 offset:{LL}
ds_read_b32 v18, v7 offset:4
s_waitcnt lgkmcnt(2)
global_store_dwordx4 v4, v[8:11], s[8:9] sc1
s_waitcnt lgkmcnt(0)
v_ffbh_u32 v16, v16
v_ffbh_u32 v17, v17
v_add_u32 v16, 32, v16
v_cmp_eq_u32 vcc, 31, v16
v_cndmask_b32 v16, v16, 64, vcc
v_min_u32 v16, v16, v17''')
        for sh in (8,4,2,1): a(f'v_min_u32_dpp v16, v16, v16 row_ror:{sh} row_mask:0xf bank_mask:0xf')
        a(f'''v_readlane_b32 s20, v16, 0
v_readlane_b32 s21, v16, 16
v_readlane_b32 s22, v16, 32
v_readlane_b32 s23, v16, 48
s_min_u32 s20, s20, s21
s_min_u32 s22, s22, s23
s_min_u32 s20, s20, s22
s_sub_u32 s20, 67, s20
s_lshr_b32 s20, s20, 2
v_lshl_or_b32 v19, v18, 8, s20
v_mov_b32 v18, S53
s_and_b32 s3, {sT}, 7
s_lshl_b32 s3, s3, 8
s_and_b32 s21, {sT}, 0xf8
s_add_u32 s3, s3, s21
v_mov_b32 v2, s3
v_mov_b32 v20, 1
s_mov_b64 exec, 1
s_waitcnt vmcnt(0)
ds_add_rtn_u32 v20, v7, v20 offset:8
s_waitcnt lgkmcnt(0)
v_cmp_eq_u32 vcc, 7, v20
s_cbranch_vccz k_join
global_store_dwordx2 v2, v[18:19], s[4:5] offset:{OFF_F2} sc1''')
    def weights(self):
        a=Remap(self.a,VT,52); A0=8; BF=40; AC0=56; T=88-8
        RS=65536
        w1=a.label('w1'); w2=a.label('w2'); skip=a.label('wsk'); fin=a.label('wfin'); cen=a.label('wc')
        a(f'''s_sub_u32 s8, s2, 221
s_lshl_b32 s9, s8, 4
s_add_u32 s10, s0, s9
s_addc_u32 s11, s1, 0
s_load_dwordx4 s[12:15], s[10:11], 32
v_and_b32 v1, 63, v0
v_lshrrev_b32 v2, 4, v1
v_and_b32 v3, 15, v1
v_xor_b32 v4, v3, v2
v_lshlrev_b32 v4, 4, v4
v_lshl_add_u32 v4, v2, 8, v4
v_lshlrev_b32 v5, 2, v0
v_add_u32 v5, {RS}, v5
v_mov_b32 v6, 0
ds_write_b32 v5, v6
s_mov_b32 s16, s6
s_waitcnt lgkmcnt(0)''')
        lp=a.label('wd')
        a(f'''{lp}:
s_lshl_b32 s17, s16, 10
s_add_u32 s18, s12, s17
s_addc_u32 s19, s13, 0
s_add_u32 s20, s14, s17
s_addc_u32 s21, s15, 0
s_lshl_b32 s22, s16, 5
s_and_b32 s22, s22, 0xc0
v_xor_b32 v5, s22, v4
s_mov_b32 m0, s17
s_nop 0
global_load_lds_dwordx4 v5, s[18:19]
s_add_u32 m0, s17, 32768
s_nop 0
global_load_lds_dwordx4 v5, s[20:21]
s_add_u32 s16, s16, 12
s_cmp_lt_u32 s16, 32
s_cbranch_scc1 {lp}
v_lshrrev_b32 v4, 2, v3
v_and_b32 v5, 3, v3
v_lshl_add_u32 v6, v4, 3, v5
v_lshlrev_b32 v6, 8, v6
v_xor_b32 v7, v2, v3
v_lshl_add_u32 v6, v7, 4, v6
s_lshr_b32 s16, s6, 1
s_and_b32 s17, s6, 1
s_waitcnt vmcnt(0)
s_barrier
s_cmp_ge_u32 s6, 8
s_cbranch_scc1 {skip}''')
        for kc in range(1,4): a(f'v_xor_b32 v{112+kc}, {64*kc}, v6')
        a('v_mov_b32 v112, v6')
        a(f's_cmp_eq_u32 s8, 0\ns_cbranch_scc0 {w1}')
        a('s_lshl_b32 s18, s16, 13\ns_lshl_b32 s19, s17, 10\ns_add_u32 s18, s18, s19')
        for kc in range(4): a(f'v_add_u32 v7, s18, v{112+kc}\nds_read_b128 {vr(BF+4*kc)}, v7 offset:32768')
        a(f's_branch {w2}\n{w1}:')
        a(f'''v_lshl_add_u32 v7, v2, 2, v4
s_lshl_b32 s18, s16, 2
v_add_u32 v5, s18, v5
v_xor_b32 v5, v5, v7
v_lshl_add_u32 v7, v2, 3, v4
v_lshlrev_b32 v7, 8, v7
v_lshl_add_u32 v7, v5, 4, v7
s_lshl_b32 s18, s17, 3
v_add_u32 v7, s18, v7''')
        for kc in range(4):
            for h in range(2): a(f'ds_read_b64_tr_b16 {vr(BF+4*kc+2*h,2)}, v7 offset:{32768+8192*kc+1024*h}')
        a(f'{w2}:')
        def ard(mA):
            for kc in range(4): a(f'ds_read_b128 {vr(A0+16*(mA&1)+4*kc)}, v{112+kc} offset:{8192*(mA>>1)+1024*(mA&1)}')
        ard(0)
        for mA in range(8):
            if mA<7: ard(mA+1); a('s_waitcnt lgkmcnt(4)')
            else: a('s_waitcnt lgkmcnt(0)')
            d=AC0+4*mA
            for kc in range(4): a(f'v_mfma_f32_16x16x32_bf16 {vr(d)}, {vr(A0+16*(mA&1)+4*kc)}, {vr(BF+4*kc)}, {"0" if kc==0 else vr(d)}')
        vals=[AC0+n for n in range(32)]
        a(f'v_add_f32 v5, v{vals[0]}, v{vals[1]}')
        for v in vals[2:]: a(f'v_add_f32 v5, v5, v{v}')
        a('v_mov_b32 v7, v5\nv_permlane16_swap_b32 v7, v5\nv_add_f32 v5, v5, v7\nv_mov_b32 v7, v5\nv_permlane32_swap_b32 v7, v5\nv_add_f32 v5, v5, v7')
        a(f'v_mul_f32 v5, {hex(f2u(1/128))}, v5')
        for v in vals: a(f'v_sub_f32 v{v}, v{v}, v5')
        T=8
        a(f's_cmp_eq_u32 s8, 0\ns_cbranch_scc0 {skip}')
        for n,v in enumerate(vals): a(f'v_add_f32_dpp v{T+n}, v{v}, v{v} row_ror:8 row_mask:0xf bank_mask:0xf')
        lp=a.label('wr')
        for sh in (4,2,1):
            for n in range(32): a(f'v_add_f32_dpp v{T+n}, v{T+n}, v{T+n} row_ror:{sh} row_mask:0xf bank_mask:0xf')
        a(f'v_lshlrev_b32 v7, 4, v2\nv_add_u32 v7, {RS}, v7\ns_mov_b32 exec_lo, 0x00010001\ns_mov_b32 exec_hi, 0x00010001')
        for n in range(32): a(f'ds_add_f32 v7, v{T+n} offset:{64*(n>>2)+4*(n&3)}')
        a(f's_mov_b64 exec, -1\ns_waitcnt lgkmcnt(0)\n{skip}:\ns_barrier\ns_cmp_ge_u32 s6, 8\ns_cbranch_scc1 {fin}\ns_cmp_eq_u32 s8, 0\ns_cbranch_scc0 {cen}')
        for mA in range(8): a(f'ds_read_b128 {vr(T+4*mA)}, v7 offset:{64*mA}')
        sc=LOG2E/math.sqrt(128)
        a(f's_mov_b32 s18, {hex(f2u(-1/128))}\ns_mov_b32 s19, {hex(f2u(sc))}\ns_waitcnt lgkmcnt(0)')
        for n,v in enumerate(vals): a(f'v_fma_f32 v{v}, v{T+n}, s18, v{v}')
        for n,v in enumerate(vals): a(f'v_mul_f32 v{v}, s19, v{v}')
        a(f'''{cen}:
s_lshl_b32 s16, s6, 12
s_lshl_b32 s17, s8, 15
s_add_u32 s16, s16, s17
s_add_u32 s18, s4, s16
s_addc_u32 s19, s5, 0
s_add_u32 s18, s18, {OFF_W}
s_addc_u32 s19, s19, 0''')
        P=8
        for ks in range(4):
            for u in range(2):
                d=AC0+4*(2*ks+u)
                a(f'v_cvt_pk_bf16_f32 v{P+4*ks+2*u}, v{d}, v{d+1}\nv_cvt_pk_bf16_f32 v{P+4*ks+2*u+1}, v{d+2}, v{d+3}')
            a(f'global_store_dwordx4 V2, {vr(P+4*ks)}, s[18:19] offset:{1024*ks} sc1')
        a(f'{fin}:\ns_waitcnt vmcnt(0)\ns_barrier')
    def hop0(self):
        a=self.a
        a('s_mov_b32 s28, 0xffff0000')
        a('s_waitcnt vmcnt(0)')
        def one(t):
            s=24+2*t; x=32+4*t
            a(f'v_lshlrev_b32 v{DIS[t]}, 16, v{DIS[t]}\nv_lshlrev_b32 v40, 16, v{s}\nv_and_b32 v41, s28, v{s}\nv_lshlrev_b32 v42, 16, v{s+1}\nv_and_b32 v43, s28, v{s+1}\nv_mul_f32 v{DIS2[t]}, v{DIS[t]}, v{DIS[t]}')
            for i in range(4): a(f'v_mul_f32 v{40+i}, v{40+i}, v{DIS[t]}')
            a(f'''v_cvt_pk_bf16_f32 v{x}, v40, v41
v_cvt_pk_bf16_f32 v{x+1}, v42, v43
s_add_u32 s16, s12, {t*NU*4096}
s_addc_u32 s17, s13, 0
v_mov_b32_dpp v{x+2}, v{x} quad_perm:[1,1,3,3] row_mask:0xf bank_mask:0xf
v_mov_b32_dpp v{x+3}, v{x+1} quad_perm:[1,1,3,3] row_mask:0xf bank_mask:0xf
s_mov_b64 exec, s[22:23]
global_store_dwordx4 {vHsOff}, v[{x}:{x+3}], s[16:17] sc1''')
            a('s_mov_b64 exec, -1')
        one(0); self.cond(self.isXY, lambda: one(1))
        zc=f's_cmp_ge_u32 {sW}, 8\ns_cselect_b32 s27, {sP}, 0\ns_sub_u32 s27, s27, 1\ns_cmp_lt_u32 s27, 6'
        a(f's_lshl_b32 s27, {sP}, 10\nv_add_u32 v22, s27, {vL16}')
        def zclr():
            for i in range(4): a(f'v_mov_b32 v{40+i}, 0')
            a('global_store_dwordx4 v22, v[40:43], s[36:37] sc1')
        self.cond(zc, zclr)
        a(f'''s_getreg_b32 s27, hwreg(HW_REG_XCC_ID)
s_and_b32 s27, s27, 15
s_add_u32 s27, s27, {sNon}
v_mov_b32 v21, s27
s_lshr_b32 s27, {sW}, 2
s_lshl_b32 s27, s27, 3
s_add_u32 s27, s27, {sP}
s_lshl_b32 s27, s27, 2
v_mov_b32 v20, s27
s_waitcnt vmcnt(0)
s_mov_b64 exec, 1
global_store_dword v20, v21, s[36:37] sc1''')
        self.cond(self.isXY, lambda: a('global_store_dword v20, v21, s[36:37] offset:96 sc1'))
        a('s_mov_b64 exec, -1')
        def val(t):
            for b in (1,): a(f's_add_u32 s16, s12, {b*SLAB+t*NU*4096}\ns_addc_u32 s17, s13, 0\nglobal_load_dwordx2 v[18:19], {vHsOff}, s[16:17] sc1')
        val(0); self.cond(self.isXY, lambda: val(1))
        self.cond(zc, lambda: a('global_load_dwordx4 v[32:35], v22, s[36:37] sc1'))
    def dma(self, g, base, tbo):
        a=self.a
        a(f's_add_u32 m0, s{ZM+g}, {tbo}')
        if g==4: a(f's_cmp_eq_u32 {sW}, 11')
        for i in range(3): a(f'global_load_lds_dwordx4 v{ZR+g}, {base} offset:{1024*i} sc1')
        if g==4:
            l=a.label('n4'); a(f's_cbranch_scc1 {l}')
        a(f'global_load_lds_dwordx4 v{ZR+g}, {base} offset:3072 sc1')
        if g==4: a(f'{l}:')
    def join(self):
        a=self.a; P=RING+24; look=self.look
        a('s_mov_b64 exec, -1')
        for g in range(5):
            a(f'''s_add_u32 s27, {sW}, {4*g-8}
s_lshl_b32 s41, s27, 12
v_add_u32 v{ZR+g}, s41, {vL16}
s_cmp_ge_u32 s27, 10
s_cselect_b32 s28, 0, {3*HALF}
s_add_u32 s28, s28, s41
s_sub_u32 s{ZM+g}, s28, {HALF}''')
        lz=a.label('z0'); lj=a.label('j1')
        a(f'{self.isXY}\ns_cbranch_scc1 {lz}\ns_setprio {self.pr[3]}\nv_lshrrev_b32 v{P}, 2, {vL16}\ns_bfm_b64 exec, 40, 0')
        self.spin(f'global_load_dword v{P+1}, v{P}, s[36:37] sc1', f'v_subrev_u32 v{P+2}, {sNon}, v{P+1}\nv_cmp_le_u32 vcc, 16, v{P+2}', 2*self.ps)
        a(f'''v_readfirstlane_b32 s27, v{P+1}
v_cmp_ne_u32 vcc, s27, v{P+1}
s_mov_b64 exec, -1
s_cmp_eq_u64 vcc, 0
s_cselect_b32 s27, {0 if self.forceslow else 1}, 0
v_mov_b32 v{P+2}, 4
v_mov_b32 v{P+3}, s27
s_mov_b64 exec, 1
ds_write_b64 {vL16}, v[{P+2}:{P+3}] offset:{LCNT}
s_mov_b64 exec, -1''')
        for g in range(5): self.dma(g,'s[12:13]',0)
        self.rt(5,P+4,P+5)
        a(f's_branch {lj}\n{lz}:\ns_cmp_eq_u32 {sW}, 0\ns_cbranch_scc0 {lj}')
        a(f'''v_lshrrev_b32 v{P+1}, 1, {vL16}
s_lshl_b32 s27, {sP}, 8
v_add_u32 v{P}, s27, v{P+1}
s_cmp_lt_u32 {sP}, 5
s_cselect_b32 s27, 20, 19
s_bfm_b64 exec, s27, 0''')
        self.spin(f'global_load_dwordx2 v[{P+2}:{P+3}], v{P}, s[4:5] offset:{OFF_F2} sc1', f'v_cmp_ne_u32 vcc, {sNon}, v{P+2}', self.ps)
        a(f'ds_write_b32 v{P+1}, v{P+3} offset:{LCNT+64}\ns_mov_b64 exec, -1\n{lj}:\ns_waitcnt lgkmcnt(0)\ns_barrier')
        a(f's_lshl_b32 s27, {sW}, 3\nv_mov_b32 v{P}, s27\nds_read_b32 v{P+1}, v{P} offset:{LCNT+64}\nds_read_b32 v{P+2}, v{P} offset:{LCNT+64+8*NU}\nds_read_b32 v{P+3}, {vL16} offset:{LCNT+4}')
        def img(t):
            a(f's_lshl_b32 s27, {sT0}, 13\ns_add_u32 s16, s4, s27\ns_addc_u32 s17, s5, 0\ns_add_u32 s16, s16, {OFF_IMG+t*NU*8*8192+4096}\ns_addc_u32 s17, s17, 0')
            base=IDX+TS*t+2*QMAX
            for o in range(8):
                r=base+4*o
                if 2*o+1<QMAX: a(f'global_load_dwordx4 v[{r}:{r+3}], {vL16}, s[16:17] offset:{1024*o-4096} sc1')
                else: a(f'global_load_dwordx2 v[{r}:{r+1}], {vL16}, s[16:17] offset:{1024*o-4096} sc1')
        has2=f's_cmp_lt_u32 {sT0}, {157-NU*8}'
        img(0); self.cond(has2, lambda: img(1))
        a(f'''s_waitcnt lgkmcnt(0)
v_readfirstlane_b32 s9, v{P+1}
v_readfirstlane_b32 s10, v{P+2}
v_readfirstlane_b32 {sFast}, v{P+3}
s_lshr_b32 s32, s9, 8
s_lshr_b32 s33, s10, 8
s_and_b32 s9, s9, 0xff
s_and_b32 s10, s10, 0xff
s_max_u32 s9, s9, {Q0+look}
s_max_u32 s10, s10, 8
{has2}
s_cselect_b32 s10, s10, 0
s_cselect_b32 s33, s33, 0''')
        self.rt(6,P+4,P+5)
        def unpack(t):
            b=IDX+TS*t
            for i in range(2*QMAX):
                s=b+2*QMAX+i
                for h in range(2):
                    a(f'v_lshlrev_b32_sdwa v{b+2*i+h}, 3, v{s} dst_sel:DWORD dst_unused:UNUSED_PAD src0_sel:DWORD src1_sel:WORD_{h}')
        a('s_waitcnt vmcnt(0)')
        unpack(0); self.cond(has2, lambda: unpack(1))
        a('s_waitcnt lgkmcnt(0)\ns_barrier')
        self.rt(7,P+4,P+5)
    def signalU(self):
        self.a(f's_mov_b64 exec, 1\ns_waitcnt vmcnt(0)\nds_add_u32 {vL16}, {vOne} offset:{LCNT}\ns_mov_b64 exec, -1')
    def waitU(self):
        a=self.a; lp=a.label('wl'); ok=a.label('wk'); r=RING+28
        a(f'''{lp}:
ds_read_b32 v{r}, {vL16} offset:{LCNT}
s_add_u32 {sTry}, {sTry}, 1
s_waitcnt lgkmcnt(0)
v_readfirstlane_b32 s27, v{r}
s_cmp_ge_u32 s27, {sTgt}
s_cbranch_scc1 {ok}
s_cmp_lt_u32 {sTry}, {TRYMAX}
s_cbranch_scc1 {lp}
{ok}:''')
    def service(self, tb):
        self.a(f's_mov_b32 s40, {HALF*tb}\ns_call_b64 s[30:31], {self.name}_svc')
    def svc_code(self):
        a=self.a; top=f'{self.name}_svc'
        def fire(g):
            gl=a.label('gl'); bk=a.label('gb')
            dst,op,off=(f's[{FLR}:{FLR+7}]','x8',0) if g<4 else (f's[{FLR+8}:{FLR+9}]','x2',32)
            a(f's_cmp_ge_u32 s43, s42\ns_cbranch_scc1 {gl}\ns_load_dword{op} {dst}, s[36:37], s43 offset:{off}\ns_add_u32 s43, s43, 64\n{bk}:')
            self.cold.append((gl,bk,lambda _: a(f's_load_dword{op} {dst}, s[36:37], {64*(self.R-1)+off} glc\ns_add_u32 {sTry}, {sTry}, 1')))
        a(f'{top}:\ns_mov_b32 s43, 0\ns_mul_i32 s42, {sFast}, {64*(self.R-1)}')
        fire(self.order[0])
        for n,g in enumerate(self.order):
            lp=a.label('pl'); ok=a.label('po')
            a(f'{lp}:\ns_waitcnt lgkmcnt(0)\ns_cmp_eq_u64 s[{FLR+2*g}:{FLR+2*g+1}], s[58:59]\ns_cbranch_scc1 {ok}')
            fire(g)
            a(f's_cmp_lt_u32 {sTry}, {TRYMAX}\ns_cbranch_scc1 {lp}\n{ok}:')
            nxt=self.order[n+1] if n<4 else None
            if nxt is not None and n!=2:
                if nxt<4:
                    l=a.label('nf'); a(f's_cmp_eq_u64 s[{FLR+2*nxt}:{FLR+2*nxt+1}], s[58:59]\ns_cbranch_scc1 {l}'); fire(nxt); a(f'{l}:')
                else: fire(nxt)
            self.dma(g,'s[54:55]','s40')
            if False: a(f's_memtime s[44:45]\ns_waitcnt lgkmcnt(0)\nv_writelane_b32 v{ZR+8}, s44, {n}\nv_writelane_b32 v{ZR+9}, s43, {n}')
            if n==2:
                a('s_waitcnt vmcnt(1)'); fire(nxt)
                self.signalU()
                if self.bst: a('s_memtime s[94:95]')
        a('s_setpc_b64 s[30:31]')
    def rd(self,t,q,tb,e):
        r=RING+8*(q%4)+2*e
        self.a(f'ds_read_b64 v[{r}:{r+1}], v{IDX+TS*t+4*q+e} offset:{HALF*tb}')
    def reads(self,t,q,tb):
        for e in range(4): self.rd(t,q,tb,e)
    def smf(self,q):
        r=RING+8*(q%4)
        self.a(f'v_smfmac_f32_16x16x64_bf16 v[{ACC}:{ACC+3}], v[{AC}:{AC+3}], v[{r}:{r+7}], {vIdx}')
    def step(self,t,i,tb):
        p=self.pos; look=self.look
        for e in range(p): self.rd(t,i+look,tb,e)
        self.a(f's_waitcnt lgkmcnt({4*look-4+p})'); self.smf(i)
        for e in range(p,4): self.rd(t,i+look,tb,e)
    def zero(self):
        for i in range(4): self.a(f'v_mov_b32 v{ACC+i}, 0')
    def gfix(self,t,tb,q0,q1,pre=None):
        look=self.look
        for q in range(q0,q0+look): self.reads(t,q,tb)
        if pre: pre()
        for i in range(q0,q1):
            if i+look<q1: self.step(t,i,tb)
            else:
                self.a(f's_waitcnt lgkmcnt({4*(q1-1-i)})'); self.smf(i)
    def gvar(self,t,tb,q0,qmin,pre=None,hooks={}):
        a=self.a; look=self.look
        done=a.label('gd'); tails=[a.label('tl') for _ in range(4)]
        for q in range(q0,q0+look): self.reads(t,q,tb)
        if pre: pre()
        for i in range(q0,QMAX+1-look):
            if i+look>=qmin:
                if i+look==QMAX: a(f's_branch {tails[i%4]}'); break
                a(f's_cmp_eq_u32 s{sNQ+t}, {i+look}\ns_cbranch_scc1 {tails[i%4]}')
            self.step(t,i,tb)
            if i in hooks: hooks[i]()
        for r in range(4):
            a(f'{tails[r]}:')
            for z in range(look):
                a(f's_waitcnt lgkmcnt({4*(look-1-z)})'); self.smf(r+z)
            if r<3: a(f's_branch {done}')
        a(f'{done}:')
    def pre_epi(self,t,tb):
        a=self.a
        if t==0: a(f's_add_u32 s54, s12, {sCur}\ns_addc_u32 s55, s13, 0\ns_mov_b64 s[56:57], s[14:15]')
        else: a(f's_add_u32 s54, s12, {sCur}\ns_addc_u32 s55, s13, 0\ns_add_u32 s54, s54, {NU*4096}\ns_addc_u32 s55, s55, 0\ns_add_u32 s56, s14, {NU*4096}\ns_addc_u32 s57, s15, 0')
        a(f's_xor_b32 s{sSpec}, {sFast}, 1\ns_or_b32 s{sSpec}, s{sSpec}, s{sSlow+t}')
        if tb==0: a(f's_cmp_eq_u32 {sHop}, 7\ns_cselect_b32 s{sSpec}, 1, s{sSpec}')
    def flag(self,t):
        a=self.a; sl=a.label('fs'); dn=a.label('fd')
        a(f's_cmp_lg_u32 s{sSpec+2*0}, 0\ns_cbranch_scc1 {dn}\ns_mov_b64 exec, s[48:49]\ns_waitcnt vmcnt(1)\nglobal_store_byte {vL16}, {vOne}, s[38:39] offset:{24*t}\ns_mov_b64 exec, -1\n{dn}:')
    def epilogue(self,t,tb):
        a=self.a; e=RING; X=RING+8
        sp=a.label('sp'); tok=a.label('tok')
        def hs():
            for i in range(4): a(f'v_mul_f32 v{e+4+i}, v{ACC+i}, v{DIS2[t]}')
            a(f'v_cvt_pk_bf16_f32 v{X}, v{e+4}, v{e+5}\nv_cvt_pk_bf16_f32 v{X+1}, v{e+6}, v{e+7}')
        a(f's_cmp_lg_u32 s{sSpec}, 0\ns_cbranch_scc1 {sp}\ns_nop 5')
        hs()
        a(f'global_store_dwordx2 {vHsOff}, v[{X}:{X+1}], s[54:55]\n{tok}:')
        for i in range(4): a(f'v_mul_f32 v{e+i}, v{ACC+i}, v{DIS[t]}')
        a(f'''v_cvt_pk_bf16_f32 v{X+4}, v{e}, v{e+1}
v_cvt_pk_bf16_f32 v{X+5}, v{e+2}, v{e+3}
v_mov_b32_dpp v{X+6}, v{X+4} quad_perm:[1,1,3,3] row_mask:0xf bank_mask:0xf
v_mov_b32_dpp v{X+7}, v{X+5} quad_perm:[1,1,3,3] row_mask:0xf bank_mask:0xf
s_mov_b64 exec, s[22:23]
global_store_dwordx4 {vHsOff}, v[{X+4}:{X+7}], s[56:57] sc1
s_mov_b64 exec, -1''')
        def spf(_):
            self.cond(f's_cmp_lg_u32 s{sSlow+t}, 0', lambda: a(f's_add_u32 s34, {sT0}, {t*NU*8}\ns_mov_b32 s35, {HALF*tb}\ns_call_b64 s[30:31], {self.name}_slow'))
            a('s_nop 7')
            if tb==0: a(f's_cmp_eq_u32 {sHop}, 7\ns_cbranch_scc1 {tok}')
            hs()
            a(f'''v_mov_b32_dpp v{X+2}, v{X} quad_perm:[1,1,3,3] row_mask:0xf bank_mask:0xf
v_mov_b32_dpp v{X+3}, v{X+1} quad_perm:[1,1,3,3] row_mask:0xf bank_mask:0xf
s_mov_b64 exec, s[22:23]
global_store_dwordx4 {vHsOff}, v[{X}:{X+3}], s[54:55] sc1
s_mov_b64 exec, s[48:49]
s_waitcnt vmcnt(0)
global_store_byte {vL16}, {vOne}, s[38:39] offset:{24*t} sc1
s_mov_b64 exec, -1''')
        self.cold.append((sp,tok,spf))
    def loop(self, fin):
        a=self.a; name=self.name; pr=self.pr; look=self.look
        a(f'{name}_loop:')
        for tb in range(2):
            a(f's_add_u32 {sHop}, {sHop}, 1\ns_lshl_b32 {sTgt}, {sHop}, 2')
            self.stamp(tb)
            self.waitU()
            self.stamp(tb)
            def rot():
                a(f'''s_xor_b32 {sCur}, {sCur}, {SLAB}
s_add_u32 s14, s14, {SLAB}
s_addc_u32 s15, s15, 0
s_add_u32 s36, s36, {FSH}
s_addc_u32 s37, s37, 0
s_add_u32 s38, s38, {FSH}
s_addc_u32 s39, s39, 0''')
            self.gfix(0,tb,0,Q0,pre=self.zero)
            self.stamp(tb)
            l2=a.label('u2'); lx=a.label('x')
            rot(); self.pre_epi(0,tb)
            a(f'{self.isXY}\ns_cbranch_scc0 {lx}\ns_setprio {pr[1]}\n{lx}:\ns_waitcnt vmcnt(0)\ns_barrier')
            if tb==0: self.pf_pub()
            self.stamp(tb)
            self.gvar(0,tb,Q0,Q0+look)
            self.stamp(tb)
            self.epilogue(0,tb)
            self.stamp(tb)
            lz=a.label('z'); le=a.label('e'); lv=a.label('v0'); rv=a.label('rv'); lv1=a.label('v1')
            a(f'{self.isXY}\ns_cbranch_scc0 {lz}\ns_setprio {pr[2]}')
            a(f's_cmp_eq_u32 s{sNQ+1}, 0\ns_cbranch_scc1 {lv}')
            self.gvar(1,tb,0,8,pre=self.zero,hooks={self.hq: lambda: (self.flag(0), self.pre_epi(1,tb))})
            a(f'{lv1}:')
            self.cold.append((lv,lv1,lambda _,tb=tb: (self.zero(), self.flag(0), self.pre_epi(1,tb))))
            self.stamp(tb)
            self.epilogue(1,tb); self.flag(1)
            a(f's_setprio {pr[0]}\ns_branch {le}\n{lz}:')
            if tb==0: a(f's_cmp_eq_u32 {sHop}, 7\ns_cbranch_scc1 k_z7')
            self.flag(0)
            self.service(1-tb)
            if self.bst and tb==1: a('s_waitcnt lgkmcnt(0)\ns_mov_b32 s88, s94')
            a(f'{le}:')
            self.stamp(tb)
            if tb==0: a(f's_cmp_eq_u32 {sHop}, 7\ns_cbranch_scc1 {fin}')
        a(f's_branch {name}_loop')
        self.svc_code()
    def coldcode(self, sc=''):
        a=self.a
        for lab,back,fn in self.cold:
            a(f'{lab}:'); fn('sc1'); a(f's_branch {back}')
        self.slow_code(sc)
    def rec_code(self):
        a=self.a; n=self.name; r=RING; c=RING+16
        a(f'''{n}_rec:
s_mov_b32 s27, 0
{n}_rec_b:
s_lshl_b32 s41, s27, 12
s_add_u32 s16, s12, s41
s_addc_u32 s17, s13, 0
s_add_u32 s16, s16, {sPrev}
s_addc_u32 s17, s17, 0
s_cmp_ge_u32 s27, 10
s_cselect_b32 s28, 0, {3*HALF}
s_add_u32 s28, s28, s41
s_sub_u32 s28, s28, {HALF}
s_add_u32 s28, s28, s40
v_add_u32 v{c+2}, s28, {vL16}
{n}_rec_r:
s_mov_b32 m0, s28
s_cmp_eq_u32 s27, 19
global_load_lds_dwordx4 {vL16}, s[16:17] sc1
global_load_lds_dwordx4 {vL16}, s[16:17] offset:1024 sc1
global_load_lds_dwordx4 {vL16}, s[16:17] offset:2048 sc1
s_cbranch_scc1 {n}_rec_4
global_load_lds_dwordx4 {vL16}, s[16:17] offset:3072 sc1
{n}_rec_4:
s_waitcnt vmcnt(0)''')
        for i in range(3): a(f'ds_read_b128 v[{r+4*i}:{r+4*i+3}], v{c+2} offset:{1024*i}')
        a(f's_cselect_b32 s41, 0, 3072\nv_add_u32 v{c+3}, s41, v{c+2}\nds_read_b128 v[{r+12}:{r+15}], v{c+3}')
        a(f'''s_waitcnt lgkmcnt(0)
v_max3_u32 v{c}, v{r}, v{r+1}, v{r+2}
v_max3_u32 v{c+1}, v{r+3}, v{r+4}, v{r+5}
v_max3_u32 v{c}, v{c}, v{r+6}, v{r+7}
v_max3_u32 v{c+1}, v{c+1}, v{r+8}, v{r+9}
v_max3_u32 v{c}, v{c}, v{r+10}, v{r+11}
v_max3_u32 v{c+1}, v{c+1}, v{r+12}, v{r+13}
v_max3_u32 v{c}, v{c}, v{r+14}, v{r+15}
v_max_u32 v{c}, v{c}, v{c+1}
v_cmp_eq_u32 vcc, -1, v{c}
s_add_u32 {sTry}, {sTry}, 1
s_cmp_ge_u32 {sTry}, {TRYMAX}
s_cbranch_scc1 {n}_rec_n
s_cbranch_vccnz {n}_rec_r
{n}_rec_n:
s_add_u32 s27, s27, 1
s_cmp_lt_u32 s27, 20
s_cbranch_scc1 {n}_rec_b
s_add_u32 {sRec}, {sRec}, 1
s_setpc_b64 s[30:31]''')
    def slow_code(self, sc=''):
        a=self.a; name=self.name; r=RING
        a(f'{name}_slow:\ns_mov_b32 s40, -1\nv_lshrrev_b32 v{r+8}, 4, {vL16}\nv_mov_b32 v{r+12}, 0x80000')
        for i in range(2,8): a(f'v_mov_b32 v{r+i}, 0')
        a(f'''{name}_sl_list:
s_and_b32 s41, s34, 7
s_lshl_b32 s41, s41, 8
s_and_b32 s42, s34, 0xf8
s_add_u32 s41, s41, s42
s_add_u32 s41, s41, {OFF_F2+4}
s_lshl_b32 s42, s40, 3
s_add_u32 s42, s42, {OFF_F1+4}
s_lshl_b32 s43, s34, 14
s_add_u32 s43, s43, {OFF_SPILL}
s_mul_i32 s44, s40, 20480
s_add_u32 s44, s44, {OFF_OVF1}
s_cmp_eq_u32 s40, -1
s_cselect_b32 s41, s41, s42
s_cselect_b32 s43, s43, s44
v_mov_b32 v{r+9}, s41
global_load_dword v{r+9}, v{r+9}, s[4:5] {sc}
s_mov_b32 s45, 0
s_waitcnt vmcnt(0)
v_readfirstlane_b32 s44, v{r+9}
s_nop 0
s_bfe_u32 s41, s44, 0x100008
s_cmp_eq_u32 s40, -1
s_cselect_b32 s44, s41, s44
{name}_sl_chunk:
s_cmp_ge_u32 s45, s44
s_cbranch_scc1 {name}_sl_next
v_add_u32 v{r+9}, s45, v{r+8}
v_lshl_add_u32 v{r+10}, v{r+9}, 2, s43
global_load_dword v{r+10}, v{r+10}, s[4:5] {sc}
v_cmp_gt_u32 s[46:47], s44, v{r+9}
s_waitcnt vmcnt(0)
v_lshrrev_b32 v{r+11}, 22, v{r+10}
v_cmp_eq_u32 vcc, s34, v{r+11}
s_and_b64 s[46:47], s[46:47], vcc
{name}_sl_bit:
s_cmp_eq_u64 s[46:47], 0
s_cbranch_scc1 {name}_sl_cdone
s_ff1_i32_b64 s41, s[46:47]
s_bitset0_b64 s[46:47], s41
v_readlane_b32 s42, v{r+10}, s41
s_nop 3
s_bfe_u32 s41, s42, 0x60010
s_and_b32 s42, s42, 0xffff
s_lshl_b32 s42, s42, 3
s_add_u32 s42, s42, s35
v_mov_b32 v{r+11}, s42
v_cmp_eq_u32 vcc, s41, v{r+8}
v_cndmask_b32 v{r+11}, v{r+12}, v{r+11}, vcc
ds_read_b64 v[{r}:{r+1}], v{r+11}
s_waitcnt lgkmcnt(0)''')
        self.smf(0)
        a(f'''s_nop 7
s_branch {name}_sl_bit
{name}_sl_cdone:
s_add_u32 s45, s45, 64
s_branch {name}_sl_chunk
{name}_sl_next:
s_add_u32 s40, s40, 1
s_cmp_lt_u32 s40, 64
s_cbranch_scc1 {name}_sl_list
s_setpc_b64 s[30:31]''')
    def pf_pub(self):
        a=self.a; r=RING+8*((Q0+self.look)%4)+2
        def f():
            a(f's_lshl_b32 s27, {sP}, 5\ns_add_u32 s27, s27, {sSlice}\ns_lshl_b32 s27, s27, 2\nv_mov_b32 v{r}, s27\nv_mov_b32 v{r+1}, {sNon}\ns_mov_b64 exec, 1\nglobal_store_dword v{r}, v{r+1}, s[4:5] offset:{OFF_PF} sc1\ns_mov_b64 exec, -1')
        self.cond(f's_lshl_b32 s27, {sW}, 3\ns_add_u32 s27, s27, {sHop}\ns_cmp_eq_u32 s27, {8*11+7}', f)
    def tok_lane(self, v, vL16=vL16):
        self.a(f'''v_lshrrev_b32 v{v+3}, 4, {vL16}
v_mul_u32_u24 v{v}, 205, v{v+3}
v_lshrrev_b32 v{v}, 12, v{v}
v_mul_u32_u24 v{v+1}, 20, v{v}
v_sub_u32 v{v+1}, v{v+3}, v{v+1}
s_mul_i32 s42, {sSlice}, 40
v_lshl_add_u32 v{v+1}, v{v+1}, 1, s42
v_lshrrev_b32 v{v+2}, 6, v{v+1}
v_lshl_add_u32 v{v+2}, v{v+2}, 3, {sP}
v_and_b32 v{v+1}, 63, v{v+1}
v_lshl_add_u32 v{v+1}, v{v+2}, 6, v{v+1}
s_mov_b32 s42, {NP*8}
v_mul_lo_u32 v{v}, v{v}, s42
v_lshl_add_u32 v{v}, v{v+1}, 3, v{v}''')
    def flags32(self, off, v, vL16=vL16):
        a=self.a
        a(f'v_lshrrev_b32 v{v}, 2, {vL16}\ns_lshl_b32 s27, {sP}, 7\nv_add_u32 v{v}, s27, v{v}\ns_mov_b32 exec_hi, 0')
        self.spin(f'global_load_dword v{v+1}, v{v}, s[4:5] offset:{off} sc1', f'v_cmp_ne_u32 vcc, {sNon}, v{v+1}', self.ps)
        a('s_mov_b64 exec, -1')
    def z7(self):
        a=self.a; v=RING
        a('k_z7:')
        self.tok_lane(v); self.flags32(OFF_PF, v+4)
        a(f'''s_sub_u32 s43, {sW}, 8
k_z7l:
s_mul_i32 s42, s43, 373
s_lshr_b32 s42, s42, 12
s_mul_i32 s44, s42, 11
s_sub_u32 s44, s43, s44
s_mul_i32 s45, s42, {SLAB}
s_mul_i32 s46, s44, {3*NP*8}
s_add_u32 s45, s45, s46
s_add_u32 s40, s4, s45
s_addc_u32 s41, s5, 0
s_add_u32 s40, s40, {OFF_TOK+SLAB}
s_addc_u32 s41, s41, 0
s_mul_i32 s45, s42, {KST}
s_mul_i32 s46, s44, 960
s_add_u32 s45, s45, s46
s_cmp_ge_u32 s42, 3
s_cselect_b32 s46, {HALF}, 0
s_add_u32 s45, s45, s46
s_add_u32 m0, s45, {LK7+KST}
s_cmp_eq_u32 s44, 10
s_cselect_b32 s46, 8, 28
s_bfm_b32 exec_hi, s46, 0
global_load_lds_dwordx4 v{v}, s[40:41] sc1
s_add_u32 s43, s43, 4
s_cmp_lt_u32 s43, 66
s_cbranch_scc1 k_z7l
s_mov_b64 exec, -1
s_branch k_c0''')
    def cphase(self):
        a=self.a
        a(f'k_fin:\ns_waitcnt vmcnt(0)\nk_c0:\ns_setprio 0')
        if self.bst: self.dump()
        a(f'''s_load_dwordx2 s[78:79], s[0:1], 0
s_load_dwordx4 s[44:47], s[0:1], 64
v_mov_b32 {vW}, {vL16}
s_lshl_b32 s27, {sP}, 5
s_add_u32 s27, s27, {sSlice}
s_lshl_b32 s27, s27, 2
v_mov_b32 v40, s27
v_mov_b32 v41, {sNon}
s_barrier''')
        self.cond(f's_cmp_eq_u32 {sW}, 0', lambda: a(f's_mov_b64 exec, 1\nglobal_store_dword v40, v41, s[4:5] offset:{OFF_DF} sc1\ns_mov_b64 exec, -1'))
        self.rt(8,42,43)
        def wdma(mat):
            a(f's_lshl_b32 s42, {sW}, 12\ns_add_u32 s40, s4, s42\ns_addc_u32 s41, s5, 0\ns_add_u32 s40, s40, {OFF_W+32768*mat}\ns_addc_u32 s41, s41, 0\ns_add_u32 m0, s42, {LWU*mat}\ns_nop 0')
            for i in range(4): a(f'global_load_lds_dwordx4 {vW}, s[40:41] offset:{1024*i} sc1')
        self.cond(self.isXY, lambda: wdma(0))
        c_setup(a, sW, sP, sSlice)
        one=a.label('one')
        a(f's_waitcnt lgkmcnt(0)\ns_cmp_ge_u32 {sW}, 8\ns_cbranch_scc1 {one}')
        c_loads(a,2)
        self.tok_lane(44,vW)
        a(f'''s_mul_i32 s42, {sW}, {3*NP*8}
s_add_u32 s40, s4, s42
s_addc_u32 s41, s5, 0
s_add_u32 s40, s40, {OFF_TOK+7*SLAB}
s_addc_u32 s41, s41, 0
s_mul_i32 s42, {sW}, 960
s_add_u32 m0, s42, {LK7}''')
        self.flags32(OFF_DF, 40, vW)
        a('s_bfm_b32 exec_hi, 28, 0\nglobal_load_lds_dwordx4 v44, s[40:41] sc1')
        def k7b():
            a(f'''s_add_u32 s40, s40, {24*NP*8}
s_addc_u32 s41, s41, 0
s_add_u32 m0, s42, {LK7+8*960}
s_cmp_eq_u32 {sW}, 2
s_cselect_b32 s42, 8, 28
s_bfm_b32 exec_hi, s42, 0
global_load_lds_dwordx4 v44, s[40:41] sc1''')
        self.cond(f's_cmp_lt_u32 {sW}, 3', k7b)
        a('s_mov_b64 exec, -1')
        self.rt(9,42,43)
        wdma(1); c_body(self,2,4)
        self.rt(13,4,5)
        def gen():
            a(f's_add_u32 s27, {sGen}, 1\nv_mov_b32 v4, {OFF_GEN}\nv_mov_b32 v5, s27\ns_mov_b64 exec, 1\nglobal_store_dword v4, v5, s[4:5]')
        self.cond(f's_or_b32 s27, s2, {sW}\ns_cmp_eq_u32 s27, 0', gen)
        a(f's_endpgm\n{one}:')
        c_loads(a,1); c_body(self,1,0)
        self.rt(13,4,5)
        a('s_endpgm')
    def dump(self):
        a=self.a
        a(f's_lshl_b32 s27, s2, 4\ns_add_u32 s27, s27, {sW}\ns_lshl_b32 s27, s27, 8\ns_add_u32 s27, s27, {OFF_DBG+128}\nv_mov_b32 v40, s27\ns_waitcnt lgkmcnt(0)')
        for i in range(self.nst): a(f'v_mov_b32 v41, s{76+2*i}\nglobal_store_dword v40, v41, s[4:5] offset:{4*i}')
        for i,s in enumerate((sTry,sFast,sRec)): a(f'v_mov_b32 v41, {s}\nglobal_store_dword v40, v41, s[4:5] offset:{4*self.nst+4*i}')
    def build(self):
        a=self.a
        a.head.append('; @launch grid=(256,1,1) block=(768,1,1) lds=163840')
        a.begin(NAME)
        self.entry()
        self.rt(0)
        self.a1(); self.rt(1)
        a('s_branch k_h0\nk_np:')
        self.codepf()
        if self.xdelay: a(f's_sleep {self.xdelay}')
        self.xloads(); self.rt(0)
        self.cond('s_cmp_lt_u32 s2, 221', self.a2_init)
        self.nonce()
        a('k_h0:')
        self.setup(); self.hop0()
        a('s_cmp_lt_u32 s2, 64\ns_cbranch_scc1 k_join\ns_cmp_lt_u32 s2, 221\ns_cbranch_scc0 k_w')
        self.rt(1)
        self.a2()
        a('k_join:')
        self.join()
        self.loop('k_fin')
        self.z7()
        self.cphase()
        a('k_w:\ns_cmp_lt_u32 s2, 223\ns_cbranch_scc0 k_join')
        self.weights(); self.rt(4)
        a('s_branch k_join')
        self.coldcode('sc1')
        a('k_end:\ns_endpgm')
        a.end(NAME,168,102)
        return a.text()

LWU=81920; LSC=32768; LK7=40912; KST=10256; LST=40960
TOKF=8; WF=40; CACC=72; OP=88; OACC=120; UP=136; AP=144; STA=148; vSI='v156'
vW='v157'; vScW='v158'; vScQ='v159'; vScL='v160'; vStW='v161'; vTr='v162'; vOut='v163'; vA0='v164'; vA1='v165'; vTokO='v166'; vXO='v167'
G_=88; SUM=96; YP=104; SACC=112; RL=120; RQ=128
sM1=60; sM2=62; sM3=64; sVal=66; sK0=68; sN0=70
sSW='s72'; sHi='s73'; sEps='s74'; sI128='s75'; sNI='s76'
def srd(a, d, lo, hi, nbytes):
    a(f's_mov_b32 s{d}, {lo}\ns_mov_b32 s{d+1}, {hi}\ns_mov_b32 s{d+2}, {nbytes}\ns_mov_b32 s{d+3}, 0x20000')
def c_setup(a, sW, sP, sS):
    a(f'''v_lshrrev_b32 v1, 4, {vW}
v_lshrrev_b32 v2, 4, v1
v_and_b32 v3, 15, v1
s_mul_i32 s42, {sS}, 40
s_lshl_b32 s43, {sW}, 1
s_add_u32 s42, s42, s43''')
    for t in range(2):
        if t: a('s_add_u32 s42, s42, 24')
        a(f's_lshr_b32 s43, s42, 6\ns_lshl_b32 s43, s43, 3\ns_add_u32 s43, s43, {sP}\ns_lshl_b32 s43, s43, 6\ns_and_b32 s48, s42, 63\ns_add_u32 s{sN0+t}, s43, s48')
    a(f'''v_and_b32 v4, 7, v3
v_cmp_eq_u32 s[{sK0}:{sK0+1}], 0, v4
v_cmp_eq_u32 vcc, 7, v4
v_cndmask_b32 v4, v4, 0, vcc
v_mul_u32_u24 {vTokO}, {KST}, v4
v_lshrrev_b32 v4, 2, v4
v_mul_u32_u24 v4, {HALF}, v4
v_add_u32 {vTokO}, {vTokO}, v4
v_mul_u32_u24 v5, 640, v2
v_add_u32 {vTokO}, {vTokO}, v5
v_lshrrev_b32 v5, 3, v3
v_lshl_add_u32 {vTokO}, v5, 3, {vTokO}
s_lshl_b32 s48, {sW}, 4
s_add_u32 s48, s48, {LK7}
v_add_u32 {vTokO}, s48, {vTokO}
v_and_b32 v6, 1, v2
v_lshlrev_b32 {vXO}, 8, v5
v_lshl_add_u32 {vXO}, v2, 4, {vXO}
v_and_b32 v4, 3, v3
v_cmp_eq_u32 s[{sM1}:{sM1+1}], 1, v4
v_cmp_eq_u32 s[{sM2}:{sM2+1}], 2, v4
v_cmp_eq_u32 s[{sM3}:{sM3+1}], 3, v4
v_lshrrev_b32 v7, 1, v2
v_cmp_eq_u32 s[{sVal}:{sVal+1}], v7, v5
s_lshl_b32 s48, {sW}, 8
s_add_u32 s48, s48, {LSC}
v_lshl_add_u32 {vScQ}, v3, 2, s48
v_lshl_add_u32 {vScL}, v2, 4, s48
v_lshrrev_b32 v7, 2, v3
v_cmp_eq_u32 vcc, v7, v2
v_mov_b32 v7, 0x80000
v_cndmask_b32 {vScW}, v7, {vScQ}, vcc
s_mov_b32 {sHi}, 0xffff0000
s_mov_b32 {sEps}, {hex(f2u(1e-5))}
s_mov_b32 {sI128}, {hex(f2u(1/128))}
s_mov_b32 {sNI}, {hex(f2u(-1/16384))}
v_mul_u32_u24 v7, 12, v6
v_xor_b32 v7, v7, v3
v_lshl_add_u32 v7, v2, 4, v7
s_min_u32 s48, {sW}, 8
s_add_u32 s48, s48, {sW}
s_cmp_ge_u32 s48, 10
s_cselect_b32 s49, {LST+HALF}, {LST}
s_lshl_b32 s48, s48, 12
s_add_u32 s48, s48, s49
v_lshl_add_u32 {vStW}, v7, 4, s48
v_lshrrev_b32 v7, 2, v3
v_lshl_add_u32 v7, v2, 2, v7
v_bfe_u32 v5, v3, 1, 1
v_mul_u32_u24 v4, 12, v5
v_xor_b32 v7, v7, v4
v_lshl_add_u32 v7, v5, 4, v7
v_lshlrev_b32 v7, 4, v7
v_and_b32 v4, 1, v3
v_lshl_add_u32 v7, v4, 3, v7
v_add_u32 {vTr}, s48, v7'''.replace(f's_cselect_b32 s49, {LST+HALF}, {LST}',f's_cselect_b32 s49, {HALF}, 0\ns_add_u32 s49, s49, {LST}'))
def c_loads(a, nt):
    srd(a,48,'s78','s79',N*256); srd(a,80,'s44','s45',256); srd(a,56,'s46','s47',N*256)
    a(f's_mov_b64 exec, s[{sK0}:{sK0+1}]')
    for t in range(nt):
        a(f's_lshl_b32 s42, s{sN0+t}, 8')
        for ks in range(4): a(f'buffer_load_dwordx4 {vr(TOKF+16*t+4*ks)}, {vXO}, s[48:51], s42 offen offset:{64*ks}')
    a('s_mov_b64 exec, -1\nv_and_b32 v4, 1, v3\nv_lshl_add_u32 v4, v2, 3, v4\nv_lshlrev_b32 v4, 2, v4')
    for h in range(2):
        for q in range(4): a(f'buffer_load_dword v{STA+4*h+q}, v4, s[80:83], 0 offen offset:{128*h+8*q}')
def c_body(F, nt, nvm_after):
    a=F.a; ACC=CACC
    T=range(nt)
    def st(i):
        if i in (1,4,6): F.rt({1:10,4:11,6:12}[i],134,135)
    mf='v_mfma_f32_16x16x32_bf16'; sm='v_smfmac_f32_16x16x64_bf16'
    a(f'''v_and_b32 v4, 1, v3
v_mov_b32 v5, 0x44444444
v_mov_b32 v6, 0xeeeeeeee
v_cmp_eq_u32 vcc, 1, v4
v_cndmask_b32 {vSI}, v5, v6, vcc
v_and_b32 v4, 2, v3
v_cmp_eq_u32 vcc, 0, v4
v_mov_b32 v5, 0x3f803f80''')
    for i in range(8): a(f'v_mov_b32 v{WF+i}, v5')
    for i in range(4): a(f'v_mov_b32 v{ACC+i}, 0')
    for t in T:
        for i in range(4): a(f'v_mov_b32 v{SUM+4*t+i}, 0')
    a(f's_waitcnt vmcnt({nvm_after})\ns_barrier')
    st(1)
    a(f's_andn2_b64 exec, -1, s[{sK0}:{sK0+1}]')
    for t in T:
        for ks in range(4):
            for hh in range(2): a(f'ds_read_b64 {vr(TOKF+16*t+4*ks+2*hh,2)}, {vTokO} offset:{192*t+2560*ks+320*hh}')
        if t==0 and nt==2: a('s_waitcnt lgkmcnt(4)')
    a('s_mov_b64 exec, -1')
    for i in range(8): a(f'v_cndmask_b32 v{STA+i}, v{STA+i}, v5, vcc')
    a('s_waitcnt lgkmcnt(0)')
    def stats_mfma(src, g, s):
        for ks in range(4):
            for t in T: a(f'{mf} {vr(g+4*t)}, {vr(src+16*t+4*ks)}, {vr(src+16*t+4*ks)}, {"0" if ks==0 else vr(g+4*t)}')
        for h in range(2):
            for t in T: a(f'{sm} {vr(s+4*t)}, {vr(STA+4*h)}, {vr(src+16*t+8*h,8)}, {vSI}')
    def rho(g, s, t, dst, sx):
        g=g+4*t; s=s+4*t
        a(f'''v_cndmask_b32 {dst}, v{g}, v{g+1}, s[{sM1}:{sM1+1}]
v_add_f32 {sx}, v{s}, v{s+1}
v_cndmask_b32 {dst}, {dst}, v{g+2}, s[{sM2}:{sM2+1}]
v_mul_f32 v{s}, {sx}, {sx}
v_cndmask_b32 {dst}, {dst}, v{g+3}, s[{sM3}:{sM3+1}]
v_mul_f32 v{s}, {sNI}, v{s}
v_fma_f32 {dst}, {dst}, {sI128}, v{s}
v_max_f32 {dst}, 0, {dst}
v_add_f32 {dst}, {sEps}, {dst}
v_rsq_f32 {dst}, {dst}''')
    stats_mfma(TOKF, G_, SUM)
    for h in range(2): a(f'{sm} {vr(ACC)}, {vr(STA+4*h)}, {vr(WF,8)}, {vSI}')
    for t in T:
        rho(G_,SUM,t,f'v{130+t}',f'v{132+t}')
        a(f'ds_write_b32 {vScW}, v{130+t} offset:{64*t}')
    a(f'v_add_f32 v4, v{ACC+2}, v{ACC+3}\nv_readfirstlane_b32 {sSW}, v4')
    for t in T:
        a(f'ds_read_b32 v{RQ+t}, {vScQ} offset:{64*t}\nds_read_b128 {vr(RL+4*t)}, {vScL} offset:{64*t}')
    st(2)
    a('s_waitcnt vmcnt(0) lgkmcnt(0)\ns_barrier')
    st(3)
    def wread(mat,m):
        for ks in range(4): a(f'ds_read_b128 {vr(WF+16*(m&1)+4*ks)}, {vW} offset:{4096*m+1024*ks}')
    def acc(m,t): return ACC+8*(m&1)+4*t
    def ypost(m):
        L=[]
        for t in T:
            d=acc(m,t); y=YP+4*t+2*(m&1)
            L.append(f'v_cvt_pk_bf16_f32 v{y}, v{d}, v{d+1}'); L.append(f'v_cvt_pk_bf16_f32 v{y+1}, v{d+2}, v{d+3}')
        M=[]
        if m&1:
            ks=m>>1
            for t in T: M.append(f'{mf} {vr(SACC+4*t)}, {vr(TOKF+16*t+4*ks)}, {vr(YP+4*t)}, {"0" if ks==0 else vr(SACC+4*t)}')
        return L,M
    def proj(mat,m,post_v,post_m,nxt):
        if nxt is not None: wread(*nxt); a('s_waitcnt lgkmcnt(4)')
        else: a('s_waitcnt lgkmcnt(0)')
        seq=[]
        for ks in range(4):
            for t in T:
                w=vr(WF+16*(m&1)+4*ks); k=vr(TOKF+16*t+4*ks); d=vr(acc(m,t))
                A,B=(w,k) if mat==0 else (k,w)
                seq.append(f'{mf} {d}, {A}, {B}, {"0" if ks==0 else d}')
        n=len(seq); start=min(2,n-1)
        slots=n-start
        per=-(-len(post_v)//slots) if post_v else 0
        pv=list(post_v)
        for i,s in enumerate(seq):
            a(s)
            if i>=start:
                for _ in range(per):
                    if pv: a(pv.pop(0))
        for s in pv: a(s)
        for s in post_m: a(s)
    wread(0,0)
    for m in range(8):
        L,M=ypost(m-1) if m else ([],[])
        if m==7: a(f'v_add_u32 {vW}, {LWU}, {vW}')
        proj(0,m,L,M,(0,m+1) if m<7 else (1,0))
    L,M=ypost(7)
    for s in L+M: a(s)
    st(4)
    proj(1,0,[],[],(1,1))
    for t in T:
        s=SACC+4*t; rl=RL+4*t; rq=f'v{RQ+t}'; x=f'v{130+2*t}'; y=f'v{131+2*t}'
        for r in range(4): a(f'v_mul_f32 v{s+r}, v{s+r}, v{rl+r}')
        a(f'v_max3_f32 {x}, v{s}, v{s+1}, v{s+2}\nv_max_f32 {x}, {x}, v{s+3}\nv_mov_b32 {y}, {x}')
    for t in T:
        x=f'v{130+2*t}'; y=f'v{131+2*t}'
        a(f'v_permlane16_swap_b32 {y}, {x}')
    for t in T:
        s=SACC+4*t; rq=f'v{RQ+t}'; x=f'v{130+2*t}'; y=f'v{131+2*t}'
        a(f'v_max_f32 {x}, {x}, {y}\nv_mul_f32 {x}, {x}, {rq}')
        for r in range(4): a(f'v_fma_f32 v{s+r}, v{s+r}, {rq}, -{x}')
        for r in range(4): a(f'v_exp_f32 v{s+r}, v{s+r}')
    for t in T:
        s=SACC+4*t; x=f'v{130+2*t}'; y=f'v{131+2*t}'
        a(f'v_add_f32 {x}, v{s}, v{s+1}\nv_add_f32 {y}, v{s+2}, v{s+3}\nv_add_f32 {x}, {x}, {y}\nv_mov_b32 {y}, {x}')
    for t in T:
        s=SACC+4*t; rl=RL+4*t
        for r in range(4): a(f'v_mul_f32 v{s+r}, v{s+r}, v{rl+r}')
    for t in T:
        x=f'v{130+2*t}'; y=f'v{131+2*t}'
        a(f'v_permlane16_swap_b32 {y}, {x}')
    for t in T:
        x=f'v{130+2*t}'; y=f'v{131+2*t}'
        a(f'v_add_f32 {x}, {x}, {y}\nv_rcp_f32 {x}, {x}')
    for t in T:
        s=SACC+4*t; x=f'v{130+2*t}'
        a(f'v_cndmask_b32 {x}, 0, {x}, s[{sVal}:{sVal+1}]')
        for r in range(4): a(f'v_mul_f32 v{s+r}, v{s+r}, {x}')
        a(f'v_cvt_pk_bf16_f32 v{AP+2*t}, v{s}, v{s+1}\nv_cvt_pk_bf16_f32 v{AP+2*t+1}, v{s+2}, v{s+3}')
    st(5)
    def oacc(m,t): return OACC+8*(m&1)+4*t
    def upost(m):
        L=[];M=[]
        for t in T:
            o=oacc(m,t); k=TOKF+16*t+4*(m>>1)+2*(m&1)
            L+= [f'v_lshlrev_b32 v{o}, 16, v{k}', f'v_and_b32 v{o+1}, {sHi}, v{k}', f'v_lshlrev_b32 v{o+2}, 16, v{k+1}', f'v_and_b32 v{o+3}, {sHi}, v{k+1}']
        for t in T:
            d=acc(m,t); u=UP+4*(m&1)+2*t; o=oacc(m,t)
            L+= [f'v_cvt_pk_bf16_f32 v{u}, v{d}, v{d+1}', f'v_cvt_pk_bf16_f32 v{u+1}, v{d+2}, v{d+3}']
            M.append(f'v_mfma_f32_16x16x16_bf16 {vr(o)}, {vr(u,2)}, {vr(AP+2*t,2)}, {vr(o)}')
        return L,M
    def opost(m):
        L=[]
        for t in T:
            o=oacc(m,t); p=OP+16*t+4*(m>>1)+2*(m&1)
            L+= [f'v_cvt_pk_bf16_f32 v{p}, v{o}, v{o+1}', f'v_cvt_pk_bf16_f32 v{p+1}, v{o+2}, v{o+3}']
        return L
    for m in range(1,8):
        L,M=upost(m-1)
        if m>=2: L=L+opost(m-2)
        proj(1,m,L,M,(1,m+1) if m<7 else None)
    L,M=upost(7)
    for s in L+opost(6)+M: a(s)
    G2=ACC; S2=ACC+8
    for t in T:
        for i in range(4): a(f'v_mov_b32 v{S2+4*t+i}, 0')
    for s in opost(7): a(s)
    st(6)
    stats_mfma(OP,G2,S2)
    for t in T:
        for ks in range(4): a(f'ds_write_b128 {vStW}, {vr(OP+16*t+4*ks)} offset:{4096*t+1024*ks}')
    a(f'''v_lshrrev_b32 v4, 1, v3
v_lshl_add_u32 {vA0}, v4, 6, {vScL}
v_xor_b32 {vA1}, 16, {vA0}
v_and_b32 v5, 1, v3
v_lshrrev_b32 v6, 1, v2
v_cmp_eq_u32 vcc, v5, v6
v_cmp_eq_u32 s[40:41], 0, v4
v_cmp_eq_u32 s[42:43], 1, v4
s_and_b64 s[40:41], s[40:41], vcc
s_and_b64 s[42:43], s[42:43], vcc
s_mov_b32 s44, {hex(f2u(LOG2E))}''')
    a(f'v_mov_b32 v7, {sSW}\nv_mul_f32 v7, {hex(f2u(-1/128))}, v7')
    for t in T:
        z=f'v{120+2*t}'; sx=f'v{121+2*t}'; s=S2+4*t
        a(f'v_add_f32 v{s+2}, v{s+2}, v{s+3}')
        rho(G2,S2,t,z,sx)
        a(f'v_fma_f32 v{s+2}, {sx}, v7, v{s+2}\nv_mul_f32 {z}, s44, {z}\nv_mul_f32 {z}, {z}, v{s+2}')
        a(f'ds_write_b32 {vScW}, {z} offset:{64*t}')
    Z=124
    a(f'ds_read_b128 {vr(Z)}, {vA0}\nds_read_b128 {vr(Z+4)}, {vA1}')
    if nt==1:
        for m in range(8): a(f'v_mov_b32 v{WF+4*m+2}, 0\nv_mov_b32 v{WF+4*m+3}, 0')
    def trr(m):
        for t in T: a(f'ds_read_b64_tr_b16 {vr(WF+4*m+2*t,2)}, {vTr} offset:{4096*t+1024*(m>>1)+512*(m&1)}')
    nfirst=4
    for m in range(nfirst): trr(m)
    a(f's_waitcnt lgkmcnt({nfirst*nt})')
    a(f'''v_max3_f32 v4, v{Z}, v{Z+1}, v{Z+2}
v_max3_f32 v5, v{Z+3}, v{Z+4}, v{Z+5}
v_max3_f32 v4, v4, v{Z+6}, v{Z+7}
v_max_f32 v4, v4, v5''')
    for m in range(nfirst,8): trr(m)
    for i in range(8): a(f'v_sub_f32 v{Z+i}, v{Z+i}, v4')
    for i in range(8): a(f'v_exp_f32 v{Z+i}, v{Z+i}')
    a(f'''v_add_f32 v4, v{Z}, v{Z+1}
v_add_f32 v5, v{Z+2}, v{Z+3}
v_add_f32 v6, v{Z+4}, v{Z+5}
v_add_f32 v7, v{Z+6}, v{Z+7}
v_add_f32 v4, v4, v5
v_add_f32 v6, v6, v7
v_add_f32 v4, v4, v6
v_rcp_f32 v4, v4''')
    for i in range(4): a(f'v_mul_f32 v{Z+i}, v{Z+i}, v4')
    a(f'''v_cvt_pk_bf16_f32 v4, v{Z}, v{Z+1}
v_cvt_pk_bf16_f32 v5, v{Z+2}, v{Z+3}
v_cndmask_b32 v{AP}, 0, v4, s[40:41]
v_cndmask_b32 v{AP+1}, 0, v5, s[40:41]
v_cndmask_b32 v{AP+2}, 0, v4, s[42:43]
v_cndmask_b32 v{AP+3}, 0, v5, s[42:43]''')
    a(f'''v_mov_b32 v4, s{sN0}
v_mov_b32 v5, s{sN0+1}
v_cmp_gt_u32 vcc, 2, v3
v_cndmask_b32 v4, v5, v4, vcc
v_and_b32 v5, 1, v3
v_add_u32 v4, v4, v5
v_lshlrev_b32 v4, 8, v4
v_lshl_add_u32 v4, v2, 3, v4
v_cmp_gt_u32 vcc, {2*nt}, v3
v_mov_b32 v5, -1
v_cndmask_b32 {vOut}, v5, v4, vcc
s_waitcnt lgkmcnt(0)''')
    D=TOKF
    for m in range(8): a(f'{mf} {vr(D+4*m)}, {vr(WF+4*m)}, {vr(AP)}, 0')
    a('s_mov_b64 exec, vcc')
    for m in range(8):
        a(f'v_cvt_pk_bf16_f32 v{OP+2*m}, v{D+4*m}, v{D+4*m+1}\nv_cvt_pk_bf16_f32 v{OP+2*m+1}, v{D+4*m+2}, v{D+4*m+3}')
        a(f'buffer_store_dwordx2 {vr(OP+2*m,2)}, {vOut}, s[56:59], 0 offen offset:{32*m}')


if __name__=='__main__':
    out=sys.argv[1]; kw={}
    for s in sys.argv[2:]:
        k,v=s.split('='); kw[k]=eval(v)
    f=F(**kw); t=f.build()
    hdr=open('header.txt').read()
    open(out,'w').write(hdr+t); print('nops',f.a.added)
```
